```python
import torch

def _softmax(x, axis=-1):
    return torch.softmax(x, dim=axis)

def _gelu(x):
    return torch.nn.functional.gelu(x, approximate='tanh')

def _silu(x):
    return torch.nn.functional.silu(x)

def _sigmoid(x):
    return torch.sigmoid(x)

def _layernorm(x, axis=-1, eps=1e-05):
    m = x.mean(dim=axis, keepdim=True)
    v = x.var(dim=axis, keepdim=True, unbiased=False)
    return (x - m) / torch.sqrt(v + eps)

def _scatter_add(tgt, idx, src, axis=0):
    return tgt.clone().index_add_(axis, idx, src)

def _segment_sum(src, seg, n):
    out = torch.zeros((n,) + src.shape[1:], dtype=src.dtype)
    return out.index_add_(0, seg, src)

def _pad(x, pw):
    flat = tuple((v for pair in reversed(pw) for v in pair))
    return torch.nn.functional.pad(x, flat)
kernel_name = 'adaLN_cond__grouped_kv_mqa__geglu_ffn__prompt'

def setup_inputs():

    _w = lambda a: (lambda t: t.to(torch.bfloat16) if t.is_floating_point() else t)(torch.as_tensor(a))

    def _A_setup():
        B, S, D, H = (1, 2048, 1024, 32)
        Dh = D // H
        return {'x': _w((lambda *s: torch.randn(*s, dtype=torch.bfloat16) * 0.05)(B, S, D)), 'wq': _w((lambda *s: torch.randn(*s, dtype=torch.bfloat16) * 0.05)(D, H * Dh)), 'wk': _w((lambda *s: torch.randn(*s, dtype=torch.bfloat16) * 0.05)(D, Dh)), 'wv': _w((lambda *s: torch.randn(*s, dtype=torch.bfloat16) * 0.05)(D, Dh)), 'wo': _w((lambda *s: torch.randn(*s, dtype=torch.bfloat16) * 0.05)(H * Dh, D))}
    _A_in = _A_setup()

    def _B_setup():
        B, S, D, F = (1, 2048, 1024, 3584)
        return {'x': _w((lambda *s: torch.randn(*s, dtype=torch.bfloat16) * 0.05)(B, S, D)), 'w_gate': _w((lambda *s: torch.randn(*s, dtype=torch.bfloat16) * 0.05)(D, F)), 'w_up': _w((lambda *s: torch.randn(*s, dtype=torch.bfloat16) * 0.05)(D, F)), 'w_down': _w((lambda *s: torch.randn(*s, dtype=torch.bfloat16) * 0.05)(F, D))}
    _B_in = _B_setup()
    return {'A_x': _A_in['x'], 'A_wq': _A_in['wq'], 'A_wk': _A_in['wk'], 'A_wv': _A_in['wv'], 'A_wo': _A_in['wo'], 'B_x': _B_in['x'], 'B_w_gate': _B_in['w_gate'], 'B_w_up': _B_in['w_up'], 'B_w_down': _B_in['w_down'], 'c': _w((lambda *s: torch.randn(*s, dtype=torch.bfloat16) * 0.1)(1, 1024) * 8.0), 'w_mod': _w((lambda *s: torch.randn(*s, dtype=torch.bfloat16) * 0.1)(1024, 6 * 1024) * 1024 ** (-0.5) * 8.0)}

def reference(A_x, A_wq, A_wk, A_wv, A_wo, B_x, B_w_gate, B_w_up, B_w_down, c, w_mod):

    def _A_ref(x, wq, wk, wv, wo):
        B, S, D = x.shape
        H = 32
        Dh = D // H
        q = (lambda x, *d: x.permute(*d))((x @ wq).reshape(B, S, H, Dh), 0, 2, 1, 3)
        k = x @ wk
        v = x @ wv
        scores = torch.einsum('bhqd,bkd->bhqk', q, k) * Dh ** (-0.5)
        p = _softmax(scores, axis=-1)
        o = torch.einsum('bhqk,bkd->bhqd', p, v)
        return (lambda x, *d: x.permute(*d))(o, 0, 2, 1, 3).reshape(B, S, H * Dh) @ wo

    def _B_ref(x, w_gate, w_up, w_down):
        return _gelu(x @ w_gate) * (x @ w_up) @ w_down
    x = A_x
    mod = (_silu(c) @ w_mod).reshape(c.shape[0], 6, 1, -1)
    sa, ca, ga, sb, cb, gb = (mod[:, 0].clone(), mod[:, 1].clone(), mod[:, 2].clone(), mod[:, 3].clone(), mod[:, 4].clone(), mod[:, 5].clone())
    h = _layernorm(x, axis=-1) * (1 + ca) + sa
    x = x + ga * _A_ref(h, A_wq, A_wk, A_wv, A_wo)
    h = _layernorm(x, axis=-1) * (1 + cb) + sb
    x = x + gb * _B_ref(h, B_w_gate, B_w_up, B_w_down)
    return x
```

```python
import re

TRANS = ("v_exp_f32", "v_log_f32", "v_rcp_f32", "v_rsq_f32", "v_sqrt_f32", "v_sin_f32", "v_cos_f32")

_reg_re = re.compile(r"^(-|abs\()?([vsa])(\d+)\)?$")
_rng_re = re.compile(r"^(-|abs\()?([vsa])\[(\d+):(\d+)\]\)?$")


def regs_of(tok):
    tok = tok.strip()
    m = _reg_re.match(tok)
    if m:
        return {(m.group(2), int(m.group(3)))}
    m = _rng_re.match(tok)
    if m:
        return {(m.group(2), i) for i in range(int(m.group(3)), int(m.group(4)) + 1)}
    if tok in ("vcc", "vcc_lo", "vcc_hi"):
        return {("x", "vcc")}
    if tok in ("exec", "exec_lo", "exec_hi"):
        return {("x", "exec")}
    if tok == "m0":
        return {("x", "m0")}
    return set()


def split_ops(s):
    out, depth, cur = [], 0, ""
    for ch in s:
        if ch in "[(":
            depth += 1
        if ch in "])":
            depth -= 1
        if ch == "," and depth == 0:
            out.append(cur.strip())
            cur = ""
        else:
            cur += ch
    if cur.strip():
        out.append(cur.strip())
    return out


class Ins:
    __slots__ = ("text", "op", "dst", "src", "kind", "passes", "srcC", "dpp", "wide_store_data", "nop", "label",
                 "target", "srcAB", "lds_dma", "dstart")

    def __init__(self, text):
        self.text = text
        self.label = None
        self.target = None
        self.dst = set()
        self.src = set()
        self.srcC = set()
        self.srcAB = set()
        self.kind = "other"
        self.passes = 0
        self.dpp = False
        self.wide_store_data = set()
        self.nop = 1
        self.lds_dma = False
        self.dstart = None
        t = text.split(";")[0].strip()
        if t.endswith(":"):
            self.label = t[:-1]
            self.kind = "label"
            self.op = ""
            self.nop = 0
            return
        if not t or t.startswith("."):
            self.kind = "directive"
            self.op = ""
            self.nop = 0
            return
        parts = t.split(None, 1)
        op = parts[0]
        self.op = op
        rest = parts[1] if len(parts) > 1 else ""
        ops = split_ops(rest)
        mods = ""
        if ops:
            last = ops[-1].split()
            ops[-1] = last[0]
            mods = " ".join(last[1:])
        if op == "s_nop":
            self.kind = "salu"
            self.nop = int(ops[0], 0) + 1
            return
        if op.startswith("s_cbranch") or op == "s_branch":
            self.kind = "branch"
            self.target = ops[0]
            return
        R = [regs_of(o) for o in ops]
        if op.startswith("v_mfma"):
            self.kind = "mfma"
            self.passes = 8 if "32x32" in op else 4
            self.dst = R[0]
            self.srcAB = R[1] | R[2]
            self.srcC = R[3]
            self.src = self.srcAB | self.srcC
            self.dstart = ops[0]
            return
        if op.startswith("v_"):
            self.kind = "valu"
            if "quad_perm" in mods or "row_" in mods or "_dpp" in op or "wave_" in mods:
                self.dpp = True
            if op.startswith("v_cmp"):
                self.dst = R[0]
                self.src = set().union(*R[1:])
            elif op.startswith("v_permlane") and "swap" in op:
                self.dst = R[0] | R[1]
                self.src = R[0] | R[1]
            elif op in ("v_add_co_u32", "v_sub_co_u32", "v_subrev_co_u32"):
                self.dst = R[0] | R[1]
                self.src = set().union(*R[2:])
            elif op in ("v_addc_co_u32", "v_subb_co_u32"):
                self.dst = R[0] | R[1]
                self.src = set().union(*R[2:])
            else:
                self.dst = R[0]
                self.src = set().union(*R[1:]) if len(R) > 1 else set()
                if op.startswith("v_fmac") or op.startswith("v_dot2c") or op.startswith("v_pk_fmac"):
                    self.src |= R[0]
                if op.startswith("v_cndmask") and len(R) == 3:
                    self.src |= {("x", "vcc")}
                if self.dpp or op.startswith("v_writelane"):
                    self.src |= R[0]
            return
        if op.startswith("ds_"):
            self.kind = "ds"
            if op.startswith("ds_read") or op.startswith("ds_bpermute") or op.startswith("ds_permute") or op.startswith("ds_swizzle"):
                self.dst = R[0]
                self.src = set().union(*R[1:])
            else:
                self.src = set().union(*R)
            return
        if op.startswith("global_") or op.startswith("buffer_"):
            self.kind = "vmem"
            if "_lds_" in op or " lds" in (" " + mods):
                self.lds_dma = True
                self.src = set().union(*R) | {("x", "m0")}
            elif "load" in op:
                self.dst = R[0]
                self.src = set().union(*R[1:])
            elif "store" in op or "atomic" in op:
                self.src = set().union(*R)
                if "x4" in op or "x3" in op:
                    self.wide_store_data = R[1] if op.startswith("global_") else R[0]
            return
        if op.startswith("s_"):
            self.kind = "salu"
            if op.startswith("s_cmp") or op.startswith("s_waitcnt") or op in ("s_barrier", "s_endpgm", "s_setprio", "s_sleep"):
                self.src = set().union(*R) if R else set()
            else:
                self.dst = R[0] if R else set()
                self.src = set().union(*R[1:]) if len(R) > 1 else set()
                if "saveexec" in op:
                    self.dst |= {("x", "exec")}
            return


def need(p, c):
    n = 0
    if p.kind == "valu":
        vd = {r for r in p.dst if r[0] in "va"}
        sd = {r for r in p.dst if r[0] == "s" or r == ("x", "vcc")}
        if c.kind == "mfma" and vd & c.src:
            n = max(n, 2)
        if c.kind == "valu":
            if c.dpp and vd & c.src:
                n = max(n, 2)
            if c.op.startswith("v_permlane") and vd & c.src:
                n = max(n, 2)
            if (c.op.startswith("v_readlane") or c.op.startswith("v_readfirstlane")) and vd & c.src:
                n = max(n, 1)
            if sd & c.src:
                n = max(n, 4 if (c.op.startswith("v_readlane") or c.op.startswith("v_writelane")) else 2)
        if p.op in TRANS and c.kind in ("valu", "ds", "vmem") and c.op not in TRANS and vd & c.src:
            n = max(n, 1)
        if c.kind == "vmem" and sd & c.src:
            n = max(n, 5)
        if c.kind == "salu" and sd & c.src:
            n = max(n, 1)
        if c.kind == "branch" and ("x", "vcc") in p.dst and "vcc" in c.op:
            n = max(n, 5)
    if p.kind == "mfma":
        ps = p.passes
        if c.kind == "mfma":
            if p.dst & c.srcAB:
                n = max(n, ps + 4)
            if p.dst & c.srcC:
                if not (p.dst == c.srcC and p.passes == c.passes):
                    n = max(n, ps + 2)
            elif p.dst & c.dst:
                n = max(n, ps + 2)
        elif c.kind in ("valu", "ds", "vmem"):
            if p.dst & (c.src | c.dst):
                n = max(n, ps + 4)
            if c.kind == "valu" and p.srcC & c.dst:
                n = max(n, ps - 1)
            if c.kind in ("ds", "vmem") and p.srcC & c.dst:
                n = max(n, ps - 1)
    if p.kind == "salu" and ("x", "m0") in p.dst and c.lds_dma:
        n = max(n, 1)
    if p.kind == "vmem" and p.wide_store_data and (p.wide_store_data & c.dst):
        n = max(n, 2)
    return n


MAXD = 14


class Kernel:
    def __init__(self, name, grid, block, lds, nvgpr, nsgpr=100, nagpr=0):
        self.name, self.grid, self.block, self.lds = name, grid, block, lds
        self.nvgpr, self.nsgpr, self.nagpr = nvgpr, nsgpr, nagpr
        self.ins = []
        self._lab = 0

    def __call__(self, text):
        for line in text.split("\n"):
            line = line.strip()
            if line:
                self.ins.append(Ins(line))

    def c(self, text):
        self.ins.append(Ins("; " + text))

    def label(self, l):
        self.ins.append(Ins(l + ":"))

    def newlabel(self, base="L"):
        self._lab += 1
        return f"{self.name}_{base}{self._lab}"

    def fix_hazards(self):
        out = []
        inserted = 0
        for c in self.ins:
            if c.nop > 0 and c.kind != "label":
                dist = 0
                req = 0
                for p in reversed(out):
                    if dist >= MAXD:
                        break
                    if p.nop == 0:
                        continue
                    if p.op in ("s_branch", "s_endpgm"):
                        break
                    r = need(p, c) - dist
                    if r > req:
                        req = r
                    dist += p.nop
                while req > 0:
                    k = min(req, 16)
                    out.append(Ins(f"s_nop {k - 1}"))
                    req -= k
                    inserted += 1
            out.append(c)
        self.ins = out
        pos = {i.label: n for n, i in enumerate(out) if i.label}
        for n, b in enumerate(out):
            if b.kind == "branch":
                t = pos[b.target]
                pre = []
                d = 0
                k = n
                while k >= 0 and d < MAXD:
                    if out[k].nop:
                        pre.append((out[k], d))
                        d += out[k].nop
                    k -= 1
                d2 = 0
                k = t
                while k < len(out) and d2 < MAXD:
                    c = out[k]
                    if c.nop:
                        for p, dp in pre:
                            between = dp + d2 - 0
                            if p is b:
                                continue
                            if need(p, c) > between:
                                raise Exception(f"{self.name}: hazard across branch {b.text}: '{p.text}' -> '{c.text}' need {need(p, c)} have {between}")
                        d2 += c.nop
                        if c.op in ("s_branch", "s_endpgm"):
                            break
                    k += 1
        return inserted

    def check_regs(self):
        mv = ms = ma = -1
        for i in self.ins:
            for r in i.dst | i.src:
                if r[0] == "v":
                    mv = max(mv, r[1])
                if r[0] == "s":
                    ms = max(ms, r[1])
                if r[0] == "a":
                    ma = max(ma, r[1])
        assert mv < self.nvgpr, (self.name, "vgpr", mv, self.nvgpr)
        assert ms < self.nsgpr, (self.name, "sgpr", ms)
        assert ma < self.nagpr or ma < 0, (self.name, "agpr", ma)
        return mv, ms, ma

    def text(self):
        self.fix_hazards()
        self.check_regs()
        s = f".globl {self.name}\n.p2align 8\n.type {self.name},@function\n{self.name}:\n"
        for i in self.ins:
            if i.label:
                s += i.text + "\n"
            else:
                s += "    " + i.text + "\n"
        return s

    def desc(self):
        acc = (self.nvgpr + 3) // 4 * 4
        tot = acc + self.nagpr if self.nagpr else self.nvgpr
        return f""".p2align 6
.amdhsa_kernel {self.name}
  .amdhsa_next_free_vgpr {tot}
  .amdhsa_next_free_sgpr {self.nsgpr}
  .amdhsa_accum_offset {acc}
  .amdhsa_group_segment_fixed_size 0
  .amdhsa_kernarg_size 112
  .amdhsa_user_sgpr_count 2
  .amdhsa_user_sgpr_kernarg_segment_ptr 1
  .amdhsa_system_sgpr_workgroup_id_x 1
.end_amdhsa_kernel
"""

    def launch(self):
        return f"; @launch kernel={self.name} grid=({self.grid},1,1) block=({self.block},1,1) lds={self.lds}"
```

```python
from asmlib import Kernel

MODP = 0x000000
ST1 = 0x020000
KN = 0x028000
UTP = 0x030000
ST2 = 0x3C00000
KV = 0x0C0000
WQKV = 0x100000
WO = 0x400000
QATT = 0x600000
OFM = 0xA00000
X2 = 0xE00000
Y2 = 0x1200000
WGU = 0x1600000
WD = 0x2500000
ACT = 0x2D00000

pX, pWQ, pWK, pWV, pWO, pWG, pWU, pWD, pC, pWMOD, pOUT, pDBG, pWS = 16, 18, 20, 22, 24, 28, 30, 32, 34, 36, 38, 40, 42

LOG2E = 1.4426950408889634


def f32(x):
    import struct
    return "0x%08x" % struct.unpack("<I", struct.pack("<f", x))[0]


def sp(n):
    return f"s[{n}:{n+1}]"


def vr(a, n):
    return f"v[{a}:{a+n-1}]"


def load_args(k):
    k("s_load_dwordx16 s[16:31], s[0:1], 0")
    k("s_load_dwordx8 s[32:39], s[0:1], 64")
    k("s_load_dwordx4 s[40:43], s[0:1], 96")


def add64(k, d, a, off):
    k(f"s_add_u32 s{d}, s{a}, {off}")
    k(f"s_addc_u32 s{d+1}, s{a+1}, 0")


def unit_dma_offsets(k, vlane, RS, vo, vt):
    t0, t1 = vt
    k(f"v_lshrrev_b32 v{t0}, 3, v{vlane}")
    k(f"v_mul_u32_u24 v{t0}, {RS}, v{t0}")
    k(f"v_lshrrev_b32 v{t1}, 3, v{vlane}")
    k(f"v_and_b32 v{t1}, 2, v{t1}")
    k(f"v_xor_b32 v{t1}, v{t1}, v{vlane}")
    k(f"v_and_b32 v{t1}, 7, v{t1}")
    k(f"v_lshlrev_b32 v{t1}, 4, v{t1}")
    k(f"v_add_u32 v{vo[0]}, v{t0}, v{t1}")
    k(f"v_xor_b32 v{t1}, 64, v{t1}")
    k(f"v_add_u32 v{vo[1]}, v{t0}, v{t1}")
    k(f"v_add_u32 v{vo[1]}, {8*RS}, v{vo[1]}")
    k(f"v_add_u32 v{vo[2]}, {16*RS}, v{vo[0]}")
    k(f"v_add_u32 v{vo[3]}, {16*RS}, v{vo[1]}")


def unit_tr_addrs(k, vlane, sbase, va, vt, gu=False):
    t0, t1, t2 = vt
    k(f"v_lshrrev_b32 v{t0}, 4, v{vlane}")
    k(f"v_bfe_u32 v{t1}, v{vlane}, 2, 2")
    k(f"v_lshlrev_b32 v{t2}, 3, v{t0}")
    k(f"v_add_u32 v{t2}, v{t2}, v{t1}")
    k(f"v_lshlrev_b32 v{t2}, 7, v{t2}")
    k(f"v_add_u32 v{t2}, s{sbase}, v{t2}")
    k(f"v_lshrrev_b32 v{t1}, 1, v{t1}")
    k(f"v_and_b32 v{t0}, 1, v{t0}")
    k(f"v_lshl_or_b32 v{t0}, v{t0}, 1, v{t1}")
    k(f"v_lshlrev_b32 v{t0}, 5, v{t0}")
    if not gu:
        k(f"v_and_b32 v{t1}, 3, v{vlane}")
        k(f"v_lshl_add_u32 v{t2}, v{t1}, 3, v{t2}")
        for t in range(4):
            k(f"v_xor_b32 v{t1}, {t*32}, v{t0}")
            k(f"v_add_u32 v{va[t]}, v{t2}, v{t1}")
    else:
        k(f"v_and_b32 v{t1}, 1, v{vlane}")
        k(f"v_lshl_add_u32 v{t2}, v{t1}, 3, v{t2}")
        k(f"v_bfe_u32 v{t1}, v{vlane}, 1, 1")
        k(f"v_lshl_add_u32 v{t2}, v{t1}, 12, v{t2}")
        k(f"v_lshl_or_b32 v{t0}, v{t1}, 4, v{t0}")
        for ch in range(8):
            k(f"v_xor_b32 v{t1}, {(ch >> 1)*32 + (ch & 1)*16}, v{t0}")
            k(f"v_add_u32 v{va[ch]}, v{t2}, v{t1}")


def unit_dma(k, sA, sB, voA, voB, sbase, stmp):
    for j in range(8):
        k(f"s_add_u32 m0, s{sbase}, {j*1024}")
        if j < 4:
            k(f"global_load_lds_dwordx4 v{voA[j]}, {sp(sA)}")
        else:
            k(f"global_load_lds_dwordx4 v{voB[j-4]}, {sp(sB)}")


def unit_tr_read(k, va, F, gu=False):
    for i in range(8):
        if gu:
            a, off = va[i], 0
        else:
            a, off = va[i & 3], (i >> 2) * 4096
        k(f"ds_read_b64_tr_b16 v[{F+4*i}:{F+4*i+1}], v{a} offset:{off}")
        k(f"ds_read_b64_tr_b16 v[{F+4*i+2}:{F+4*i+3}], v{a} offset:{off+512}")


def unpack(k, lo, hi, src):
    k(f"v_lshlrev_b32 v{lo}, 16, v{src}")
    k(f"v_and_b32 v{hi}, 0xffff0000, v{src}")


def round_bf16(k, d, s):
    k(f"v_cvt_pk_bf16_f32 v{d}, v{s}, v{s}")
    k(f"v_lshlrev_b32 v{d}, 16, v{d}")


def wave_allreduce(k, regs, tmps, op="v_add_f32"):
    for m in ("quad_perm:[1,0,3,2]", "quad_perm:[2,3,0,1]", "row_half_mirror", "row_mirror"):
        for r in regs:
            k(f"{op} v{r}, v{r}, v{r} {m} row_mask:0xf bank_mask:0xf")
    for sw in ("v_permlane16_swap_b32", "v_permlane32_swap_b32"):
        for r, t in zip(regs, tmps):
            k(f"v_mov_b32 v{t}, v{r}")
        for r, t in zip(regs, tmps):
            k(f"{sw} v{r}, v{t}")
        for r, t in zip(regs, tmps):
            k(f"{op} v{r}, v{r}, v{t}")


class Cnt:
    def __init__(self, k, name, maxv):
        self.k, self.name, self.maxv = k, name, maxv
        self.q = []
        self.done = 0

    def issue(self, tag=None):
        self.q.append(tag)

    def wait(self, tag):
        idx = max(i for i, t in enumerate(self.q) if t == tag)
        if idx < self.done:
            return
        n = len(self.q) - 1 - idx
        n = min(n, self.maxv)
        self.k(f"s_waitcnt {self.name}({n})")
        self.done = len(self.q) - n

    def wait_all(self):
        self.k(f"s_waitcnt {self.name}(0)")
        self.done = len(self.q)


import os
STAMP = os.environ.get("STAMP", "")


def stamp(k, i):
    if STAMP == k.name:
        k("s_waitcnt lgkmcnt(0)")
        k(f"s_memtime s[{64+2*i}:{65+2*i}]")
        k("s_waitcnt lgkmcnt(0)")


def stamp_flush(k, n, vtmp, s_wave):
    if STAMP != k.name:
        return
    k("s_waitcnt vmcnt(0)")
    k(f"s_memtime s[{64+2*n}:{65+2*n}]")
    k("s_waitcnt lgkmcnt(0)")
    k("s_lshl_b32 s60, s2, 4")
    k(f"s_add_u32 s60, s60, s{s_wave}")
    k("s_lshl_b32 s60, s60, 6")
    k("s_add_u32 s60, s60, 0x8000000")
    add64(k, 62, pWS, "s60")
    k(f"v_mov_b32 v{vtmp}, 0")
    for i in range(n + 1):
        k(f"v_mov_b32 v{vtmp+1}, s{64+2*i}")
        k(f"global_store_dword v{vtmp}, v{vtmp+1}, s[62:63] offset:{4*i}")
```

```python
import k_prep, k_qkv, k_gemm, k_attn
def kernels():
    return [k_prep.prep_kernel(), k_prep.repack_kernel(), k_qkv.qkv_kernel(), k_attn.attn_kernel(), k_gemm.oproj_kernel(), k_gemm.gateup_kernel(), k_gemm.down_kernel()]
```

```python
from common import *


def attn_kernel():
    CH = 32768
    RING = 3 * CH
    k = Kernel("attn_kernel", 256, 512, RING + 256, 160)
    END = "attn_end"
    Q, NEG, S, P, O, L, SEL, KF, VF = 8, 16, [32, 48], 64, 72, 88, 92, [96, 104], [112, 120]
    TMP = 128
    stamp(k, 0)
    load_args(k)
    k("v_and_b32 v1, 63, v0")
    k("v_lshrrev_b32 v2, 6, v0")
    k("v_readfirstlane_b32 s3, v2")
    k("s_cmp_ge_u32 s2, 256")
    k(f"s_cbranch_scc1 {END}")
    k("s_lshr_b32 s4, s2, 3")
    k("s_and_b32 s5, s2, 7")
    k("s_lshl_b32 s5, s5, 3")
    k("s_add_u32 s5, s5, s3")
    k("v_lshlrev_b32 v2, 4, v1")
    k("v_lshlrev_b32 v3, 4, v0")
    k("s_lshl_b32 s6, s4, 6")
    k("s_add_u32 s6, s6, s5")
    k("s_lshl_b32 s6, s6, 11")
    k(f"s_add_u32 s6, s6, {QATT}")
    k("s_lshl_b32 s12, s3, 12")
    k("v_add_u32 v4, s12, v2")
    k("s_waitcnt lgkmcnt(0)")
    add64(k, 44, pWS, "s6")
    add64(k, 46, pWS, KN)
    add64(k, 48, pWS, KN + 8192)
    add64(k, 50, pWS, KV)
    k(f"global_load_dwordx4 v[{TMP}:{TMP+3}], v3, {sp(46)}")
    k(f"global_load_dwordx4 v[{TMP+4}:{TMP+7}], v3, {sp(48)}")
    k(f"global_load_dwordx4 v[{Q}:{Q+3}], v2, {sp(44)}")
    k(f"global_load_dwordx4 v[{Q+4}:{Q+7}], v2, {sp(44)} offset:1024")
    k("s_mov_b32 s14, 0")

    def dma():
        k("s_add_u32 m0, s14, s12")
        for i in range(4):
            k(f"global_load_lds_dwordx4 v4, {sp(50)} offset:{1024*i}")
        add64(k, 50, 50, CH)
        k(f"s_add_u32 s14, s14, {CH}")
        k(f"s_cmp_eq_u32 s14, {RING}")
        k("s_cselect_b32 s14, 0, s14")
    dma()
    dma()
    k("v_lshrrev_b32 v5, 4, v1")
    k("v_xor_b32 v5, v5, v1")
    k("v_and_b32 v5, 1, v5")
    k("v_cmp_eq_u32 vcc, 0, v5")
    k("v_mov_b32 v6, 0x3f803f80")
    for i in range(4):
        k(f"v_cndmask_b32 v{SEL+i}, 0, v6, vcc")
    for i in range(16):
        k(f"v_mov_b32 v{O+i}, 0")
    for i in range(4):
        k(f"v_mov_b32 v{L+i}, 0")
    for i in range(4):
        k(f"v_mov_b32 v{P+4+i}, 0")
    for i in range(4):
        k(f"v_mov_b32 v{VF[1]+4+i}, 0")
    k("s_waitcnt vmcnt(10)")
    for i in range(4):
        k(f"v_add_f32 v{TMP+i}, v{TMP+i}, v{TMP+4+i}")
    k(f"v_max_f32 v{TMP}, v{TMP}, v{TMP+1}")
    k(f"v_max_f32 v{TMP+2}, v{TMP+2}, v{TMP+3}")
    k(f"v_max_f32 v{TMP}, v{TMP}, v{TMP+2}")
    wave_allreduce(k, [TMP], [TMP + 1], op="v_max_f32")
    k("s_lshl_b32 s6, s3, 2")
    k(f"s_add_u32 s6, s6, {RING}")
    k("v_mov_b32 v5, s6")
    k(f"ds_write_b32 v5, v{TMP}")
    k("s_waitcnt vmcnt(8)")
    for i in range(8):
        unpack(k, TMP + 8 + 2 * i, TMP + 9 + 2 * i, Q + i)
    k(f"v_mul_f32 v{TMP+2}, v{TMP+8}, v{TMP+8}")
    for i in range(1, 16):
        k(f"v_fmac_f32 v{TMP+2}, v{TMP+8+i}, v{TMP+8+i}")
    k(f"v_mov_b32 v{TMP+3}, v{TMP+2}")
    k(f"v_permlane32_swap_b32 v{TMP+2}, v{TMP+3}")
    k(f"v_add_f32 v{TMP+2}, v{TMP+2}, v{TMP+3}")
    k("s_waitcnt vmcnt(4) lgkmcnt(0)")
    k("s_barrier")
    k(f"v_mov_b32 v5, {RING}")
    k(f"ds_read_b128 v[{TMP+8}:{TMP+11}], v5")
    k(f"ds_read_b128 v[{TMP+12}:{TMP+15}], v5 offset:16")
    k("v_mov_b32 v6, v2")
    k(f"v_add_u32 v7, {CH}, v2")
    k(f"s_mov_b32 s15, {2*CH}")
    for d in range(2):
        k(f"ds_read_b128 v[{KF[0]+4*d}:{KF[0]+4*d+3}], v6 offset:{1024*d}")
    for d in range(2):
        k(f"ds_read_b128 v[{KF[1]+4*d}:{KF[1]+4*d+3}], v6 offset:{4096+1024*d}")
    for d in range(2):
        k(f"ds_read_b128 v[{VF[0]+4*d}:{VF[0]+4*d+3}], v6 offset:{2048+1024*d}")
    k("s_waitcnt lgkmcnt(6)")
    for i in range(1, 8):
        k(f"v_max_f32 v{TMP+8}, v{TMP+8}, v{TMP+8+i}")
    k(f"v_mul_f32 v{TMP+2}, v{TMP+2}, v{TMP+8}")
    k(f"v_sqrt_f32 v{TMP+2}, v{TMP+2}")
    k(f"v_mul_f32 v{TMP+2}, {f32(-1.001)}, v{TMP+2}")
    for i in range(16):
        k(f"v_mov_b32 v{NEG+i}, v{TMP+2}")
    k("s_waitcnt lgkmcnt(0)")

    def qk(t, d):
        s = S[t & 1]
        c = f"v[{NEG}:{NEG+15}]" if d == 0 else f"v[{s}:{s+15}]"
        k(f"v_mfma_f32_32x32x16_bf16 v[{s}:{s+15}], v[{KF[t&1]+4*d}:{KF[t&1]+4*d+3}], v[{Q+4*d}:{Q+4*d+3}], {c}")

    def pv(t, j):
        k(f"v_mfma_f32_32x32x16_bf16 v[{O}:{O+15}], v[{VF[t&1]+4*j}:{VF[t&1]+4*j+3}], v[{P+4*j}:{P+4*j+3}], v[{O}:{O+15}]")

    def sm(j):
        k(f"v_mfma_f32_16x16x32_bf16 v[{L}:{L+3}], v[{SEL}:{SEL+3}], v[{P+4*j}:{P+4*j+3}], v[{L}:{L+3}]")

    def ex(t, a, b):
        for i in range(a, b):
            k(f"v_exp_f32 v{S[t&1]+i}, v{S[t&1]+i}")

    def cv(t, a, b):
        for i in range(a, b):
            k(f"v_cvt_pk_bf16_f32 v{P+i}, v{S[t&1]+2*i}, v{S[t&1]+2*i+1}")

    qk(0, 0)
    qk(0, 1)
    k("s_nop 7")
    stamp(k, 1)
    k("s_mov_b32 s11, 0")
    k.label("attn_loop")
    for i in range(8):
        t = i
        if i == 6:
            k("s_waitcnt vmcnt(0) lgkmcnt(0)")
            k("s_barrier")
            k("s_cmp_ge_u32 s11, 6")
            k("s_cbranch_scc1 attn_nodma")
            dma()
            k.label("attn_nodma")
        else:
            k("s_waitcnt lgkmcnt(0)")
        qk(t + 1, 0)
        ka, ko = (6, (i + 2) * 4096) if i < 6 else (7, (i - 6) * 4096)
        va, vo = (6, (i + 1) * 4096) if i < 7 else (7, 0)
        for d in range(2):
            k(f"ds_read_b128 v[{KF[t&1]+4*d}:{KF[t&1]+4*d+3}], v{ka} offset:{ko+1024*d}")
        ex(t, 0, 4)
        pv(t - 1, 1)
        for d in range(2):
            k(f"ds_read_b128 v[{VF[(t+1)&1]+4*d}:{VF[(t+1)&1]+4*d+3}], v{va} offset:{vo+2048+1024*d}")
        ex(t, 4, 8)
        qk(t + 1, 1)
        cv(t, 0, 4)
        ex(t, 8, 10)
        sm(1)
        ex(t, 10, 12)
        pv(t, 0)
        ex(t, 12, 16)
        sm(0)
        cv(t, 4, 8)
    k("v_mov_b32 v6, v7")
    k("v_add_u32 v7, s15, v2")
    k(f"s_add_u32 s15, s15, {CH}")
    k(f"s_cmp_eq_u32 s15, {RING}")
    k("s_cselect_b32 s15, 0, s15")
    k("s_add_u32 s11, s11, 1")
    k("s_cmp_lt_u32 s11, 8")
    k("s_cbranch_scc1 attn_loop")
    pv(1, 1)
    sm(1)
    stamp(k, 2)
    k("s_lshl_b32 s6, s4, 7")
    k("s_lshl_b32 s7, s5, 1")
    k("s_add_u32 s6, s6, s7")
    k("s_lshl_b32 s6, s6, 10")
    k(f"s_add_u32 s6, s6, {OFM}")
    add64(k, 44, pWS, "s6")
    k("v_bfe_u32 v5, v1, 4, 1")
    k("v_cmp_eq_u32 vcc, 1, v5")
    k("v_lshlrev_b32 v5, 10, v5")
    k("v_lshrrev_b32 v6, 5, v1")
    k("v_lshl_add_u32 v5, v6, 8, v5")
    k("v_and_b32 v6, 15, v1")
    k("v_lshl_add_u32 v5, v6, 4, v5")
    k("s_nop 7")
    k(f"v_cndmask_b32 v{TMP}, v{L}, v{L+1}, vcc")
    k(f"v_cmp_nge_f32 vcc, v{TMP}, v{TMP+1}") if False else None
    k(f"s_mov_b32 s6, {f32(2.0 ** -64)}")
    k(f"v_cmp_nle_f32 vcc, s6, v{TMP}")
    k("s_cbranch_vccnz attn_fallback")
    k.label("attn_out")
    k(f"v_rcp_f32 v{TMP}, v{TMP}")
    for i in range(16):
        k(f"v_mul_f32 v{O+i}, v{O+i}, v{TMP}")
    for i in range(8):
        k(f"v_cvt_pk_bf16_f32 v{P+i}, v{O+2*i}, v{O+2*i+1}")
    for h in range(2):
        k(f"v_permlane32_swap_b32 v{P+4*h}, v{P+4*h+2}")
        k(f"v_permlane32_swap_b32 v{P+4*h+1}, v{P+4*h+3}")
        k(f"global_store_dwordx4 v5, v[{P+4*h}:{P+4*h+3}], {sp(44)} offset:{512*h}")
    stamp_flush(k, 3, 6, 3)
    k.label(END)
    k("s_endpgm")
    k.label("attn_fallback")
    M, LS, A = TMP + 1, TMP, TMP + 2
    add64(k, 50, pWS, KV)
    for i in range(16):
        k(f"v_mov_b32 v{O+i}, 0")
    k(f"v_mov_b32 v{M}, 0xff800000")
    k(f"v_mov_b32 v{LS}, 0")
    k("s_mov_b32 s11, 0")
    k.label("attn_fb_loop")
    for d in range(2):
        k(f"global_load_dwordx4 v[{KF[0]+4*d}:{KF[0]+4*d+3}], v2, {sp(50)} offset:{1024*d}")
    for d in range(2):
        k(f"global_load_dwordx4 v[{VF[0]+4*d}:{VF[0]+4*d+3}], v2, {sp(50)} offset:{2048+1024*d}")
    add64(k, 50, 50, 4096)
    k("s_waitcnt vmcnt(0)")
    s = S[0]
    k(f"v_mfma_f32_32x32x16_bf16 v[{s}:{s+15}], v[{KF[0]}:{KF[0]+3}], v[{Q}:{Q+3}], 0")
    qk(0, 1)
    k(f"v_max3_f32 v{A}, v{s}, v{s+1}, v{M}")
    for i in range(2, 16, 2):
        k(f"v_max3_f32 v{A}, v{s+i}, v{s+i+1}, v{A}")
    k(f"v_mov_b32 v{A+1}, v{A}")
    k(f"v_permlane32_swap_b32 v{A}, v{A+1}")
    k(f"v_max_f32 v{A}, v{A}, v{A+1}")
    k(f"v_sub_f32 v{A+1}, v{M}, v{A}")
    k(f"v_exp_f32 v{A+1}, v{A+1}")
    k(f"v_mov_b32 v{M}, v{A}")
    for i in range(16):
        k(f"v_sub_f32 v{s+i}, v{s+i}, v{A}")
    ex(0, 0, 16)
    cv(0, 0, 8)
    k(f"v_mul_f32 v{LS}, v{LS}, v{A+1}")
    for i in range(16):
        k(f"v_mul_f32 v{O+i}, v{O+i}, v{A+1}")
    for i in range(8):
        unpack(k, A + 2, A + 3, P + i)
        k(f"v_add_f32 v{LS}, v{LS}, v{A+2}")
        k(f"v_add_f32 v{LS}, v{LS}, v{A+3}")
    pv(0, 0)
    pv(0, 1)
    k("s_add_u32 s11, s11, 1")
    k("s_cmp_lt_u32 s11, 64")
    k("s_nop 7")
    k("s_nop 3")
    k("s_cbranch_scc1 attn_fb_loop")
    k(f"v_mov_b32 v{A}, v{LS}")
    k(f"v_permlane32_swap_b32 v{LS}, v{A}")
    k(f"v_add_f32 v{LS}, v{LS}, v{A}")
    k("s_nop 1")
    k("s_branch attn_out")
    return k
```

```python
from common import *


class G:
    pass


def gemm_kernel(name, NW, WM, WN, TM, TN, KS, NSLOT, NKB, Aoff, Boff, tilesB, xm, xn, nbm, nbn, pre, pre2, epi, extra_lds, nvgpr):
    g = G()
    BMt, BNt = WM * TM, WN * TN
    nA, nB = KS * BMt, KS * BNt
    iA = nA // NW
    iB = -(-nB // NW)
    assert nA % NW == 0 and iA <= 4 and iB <= 4
    NI = iA + iB
    STG = (nA + nB) * 1024
    NST = NKB // KS
    RING = STG * NSLOT
    k = Kernel(name, 256, NW * 64, RING + extra_lds, nvgpr)
    g.k, g.RING, g.TM, g.TN, g.WN, g.WM = k, RING, TM, TN, WN, WM
    END = name + "_end"
    g.END = END
    stamp(k, 0)
    load_args(k)
    k("v_and_b32 v1, 63, v0")
    k("v_lshrrev_b32 v2, 6, v0")
    k("v_readfirstlane_b32 s3, v2")
    k("s_cmp_ge_u32 s2, 256")
    k(f"s_cbranch_scc1 {END}")
    import math
    gxn = nbn // xn
    k("s_and_b32 s4, s2, 7")
    k("s_lshr_b32 s5, s2, 3")
    k(f"s_lshr_b32 s6, s4, {int(math.log2(gxn))}")
    k(f"s_and_b32 s7, s4, {gxn-1}")
    k(f"s_mul_i32 s6, s6, {xm}")
    k(f"s_mul_i32 s7, s7, {xn}")
    k(f"s_lshr_b32 s4, s5, {int(math.log2(xn))}")
    k(f"s_and_b32 s5, s5, {xn-1}")
    k("s_add_u32 s4, s4, s6")
    k("s_add_u32 s5, s5, s7")
    k(f"s_lshr_b32 s6, s3, {int(math.log2(WN))}")
    k(f"s_and_b32 s7, s3, {WN-1}")
    k("v_lshlrev_b32 v2, 4, v1")
    k("v_and_b32 v3, 15, v1")
    k("v_lshrrev_b32 v4, 4, v1")
    k(f"s_mul_i32 s8, s3, {iA}")
    k(f"s_lshl_b32 s12, s8, 10")
    if KS > 1:
        assert BMt & (BMt - 1) == 0
        k(f"s_lshr_b32 s9, s8, {int(math.log2(BMt))}")
        k(f"s_and_b32 s8, s8, {BMt-1}")
        k("s_lshl_b32 s9, s9, 7")
        k("s_add_u32 s8, s8, s9")
    k("s_lshl_b32 s8, s8, 10")
    k("v_add_u32 v5, s8, v2")
    k(f"s_mul_i32 s8, s3, {iB}")
    k(f"s_min_u32 s8, s8, {nB-iB}")
    k(f"s_lshl_b32 s13, s8, 10")
    k(f"s_add_u32 s13, s13, {nA*1024}")
    if KS > 1:
        assert BNt & (BNt - 1) == 0
        k(f"s_lshr_b32 s9, s8, {int(math.log2(BNt))}")
        k(f"s_and_b32 s8, s8, {BNt-1}")
        k(f"s_mul_i32 s9, s9, {tilesB}")
        k("s_add_u32 s8, s8, s9")
    k("s_lshl_b32 s8, s8, 10")
    k("v_add_u32 v6, s8, v2")
    k(f"s_mul_i32 s8, s6, {TM*1024}")
    k("v_add_u32 v7, s8, v2")
    k(f"s_mul_i32 s8, s7, {TN*1024}")
    k(f"s_add_u32 s8, s8, {nA*1024}")
    k("v_add_u32 v8, s8, v2")
    k(f"s_mul_i32 s8, s4, {BMt*1024}")
    k(f"s_add_u32 s8, s8, {Aoff}")
    k(f"s_mul_i32 s9, s5, {BNt*1024}")
    k(f"s_add_u32 s9, s9, {Boff}")
    k("s_waitcnt lgkmcnt(0)")
    add64(k, 44, pWS, "s8")
    add64(k, 46, pWS, "s9")
    pre(g)
    k("s_mov_b32 s14, 0")

    def dma_ops():
        ops = []
        ops.append(["s_add_u32 m0, s14, s12", f"global_load_lds_dwordx4 v5, {sp(44)}"])
        for i in range(1, iA):
            ops.append([f"global_load_lds_dwordx4 v5, {sp(44)} offset:{1024*i}"])
        ops.append(["s_add_u32 m0, s14, s13", f"global_load_lds_dwordx4 v6, {sp(46)}"])
        for i in range(1, iB):
            ops.append([f"global_load_lds_dwordx4 v6, {sp(46)} offset:{1024*i}"])
        ops[-1] += [f"s_add_u32 s44, s44, {KS*128*1024}", "s_addc_u32 s45, s45, 0",
                    f"s_add_u32 s46, s46, {KS*tilesB*1024}", "s_addc_u32 s47, s47, 0",
                    f"s_add_u32 s14, s14, {STG}", f"s_cmp_eq_u32 s14, {RING}", "s_cselect_b32 s14, 0, s14"]
        return ops

    for s in range(NSLOT):
        for grp in dma_ops():
            for i in grp:
                k(i)
    stamp(k, 1)
    pre2(g, NSLOT * NI)
    NF = KS * (TM + TN)
    ACC = g.ACC = 16
    FR = [ACC + 4 * TM * TN, ACC + 4 * TM * TN + 4 * NF]
    g.FREE = FR[0]
    k("s_mov_b32 s15, 0")

    def reads(setn):
        ops = []
        for ks in range(KS):
            for t in range(TM):
                b = FR[setn] + 4 * (ks * (TM + TN) + t)
                ops.append([f"ds_read_b128 v[{b}:{b+3}], v9 offset:{(ks*BMt+t)*1024}"])
            for t in range(TN):
                b = FR[setn] + 4 * (ks * (TM + TN) + TM + t)
                ops.append([f"ds_read_b128 v[{b}:{b+3}], v10 offset:{(ks*BNt+t)*1024}"])
        return ops

    def rd_addr():
        k("v_add_u32 v9, s15, v7")
        k("v_add_u32 v10, s15, v8")
        k(f"s_add_u32 s15, s15, {STG}")
        k(f"s_cmp_eq_u32 s15, {RING}")
        k("s_cselect_b32 s15, 0, s15")

    def mfmas(setn, first):
        ops = []
        for ks in range(KS):
            for tn in range(TN):
                for tm in range(TM):
                    c = ACC + 4 * (tm * TN + tn)
                    a = FR[setn] + 4 * (ks * (TM + TN) + TM + tn)
                    b = FR[setn] + 4 * (ks * (TM + TN) + tm)
                    src = "0" if (first and ks == 0) else f"v[{c}:{c+3}]"
                    ops.append(f"v_mfma_f32_16x16x32_bf16 v[{c}:{c+3}], v[{a}:{a+3}], v[{b}:{b+3}], {src}")
        return ops

    k(f"s_waitcnt vmcnt({min(63, (NSLOT-1)*NI)})")
    k("s_barrier")
    rd_addr()
    for grp in reads(0):
        for i in grp:
            k(i)
    stamp(k, 2)

    def step(s, par, dma, nxt, vmw, first=False):
        if nxt:
            k(f"s_waitcnt vmcnt({vmw}) lgkmcnt(0)")
            k("s_barrier")
            rd_addr()
        else:
            k("s_waitcnt lgkmcnt(0)")
        M = mfmas(par, first)
        side = []
        D = dma_ops() if dma else []
        Rr = reads(par ^ 1) if nxt else []
        while D or Rr:
            if Rr:
                side.append(Rr.pop(0))
            if Rr:
                side.append(Rr.pop(0))
            if D:
                side.append(D.pop(0))
        n = len(M)
        span = max(1, int(n * 0.8))
        pos = [int(i * span / max(1, len(side))) for i in range(len(side))]
        j = 0
        for i, m in enumerate(M):
            k(m)
            while j < len(side) and pos[j] <= i:
                for x in side[j]:
                    k(x)
                j += 1
        while j < len(side):
            for x in side[j]:
                k(x)
            j += 1

    nd = NST - NSLOT
    vfull = min(63, (NSLOT - 2) * NI)
    step(0, 0, nd > 0, True, vfull, first=True)
    s = 1
    nloop = (nd - 1) // 2
    if nloop > 0:
        k(f"s_mov_b32 s11, {nloop}")
        L = name + "_loop"
        k.label(L)
        step(1, 1, True, True, vfull)
        step(2, 0, True, True, vfull)
        k("s_sub_u32 s11, s11, 1")
        k("s_cmp_lg_u32 s11, 0")
        k(f"s_cbranch_scc1 {L}")
        s = 1 + 2 * nloop
    while s < NST:
        dma = s < nd
        nxt = s + 1 < NST
        last = min(s - 1 + NSLOT, NST - 1)
        vmw = min(63, max(0, last - (s + 1)) * NI)
        step(s, s & 1, dma, nxt, vmw)
        s += 1
    stamp(k, 3)
    epi(g)
    stamp_flush(k, 4, 10, 3)
    k.label(END)
    k("s_endpgm")
    return k


def load_modvec(g, sec, dst, tmpbase, voff, sb):
    k = g.k
    k(f"s_lshl_b32 s8, s5, 8")
    k(f"s_lshl_b32 s9, s7, 7")
    k("s_add_u32 s8, s8, s9")
    k(f"s_add_u32 s8, s8, {MODP + sec*4096}")
    add64(k, sb, pWS, "s8")
    for p in range(4):
        for tn in range(2):
            b = tmpbase + 8 * p + 4 * tn
            k(f"global_load_dwordx4 v[{b}:{b+3}], v{voff}, {sp(sb)} offset:{64*tn}")
        if p < 3:
            add64(k, sb, sb, 24576)


def fin_modvec(g, dst, tmpbase, plus1):
    k = g.k
    t = tmpbase
    for e in range(8):
        k(f"v_add_f32 v{t+e}, v{t+e}, v{t+8+e}")
        k(f"v_add_f32 v{t+16+e}, v{t+16+e}, v{t+24+e}")
    for e in range(8):
        k(f"v_add_f32 v{t+e}, v{t+e}, v{t+16+e}")
    for e in range(8):
        round_bf16(k, dst + e, t + e)
    if plus1:
        for e in range(8):
            k(f"v_add_f32 v{dst+e}, 1.0, v{dst+e}")
        for e in range(8):
            round_bf16(k, dst + e, dst + e)


def oproj_kernel():
    XR, GA, S2 = 144, 160, 168

    def pre(g):
        k = g.k
        k("v_lshlrev_b32 v11, 4, v4")
        load_modvec(g, 2, GA, 48, 11, 48)
        load_modvec(g, 4, S2, 80, 11, 48)
        k("v_lshlrev_b32 v12, 11, v3")
        k("v_lshl_add_u32 v12, v4, 3, v12")
        k("s_lshl_b32 s8, s4, 18")
        k("s_lshl_b32 s9, s6, 17")
        k("s_add_u32 s8, s8, s9")
        k("s_lshl_b32 s9, s5, 7")
        k("s_add_u32 s8, s8, s9")
        k("s_lshl_b32 s9, s7, 6")
        k("s_add_u32 s8, s8, s9")
        add64(k, 48, pX, "s8")
        for tm in range(4):
            for tn in range(2):
                b = XR + 4 * tm + 2 * tn
                k(f"global_load_dwordx2 v[{b}:{b+1}], v12, {sp(48)} offset:{32*tn}")
            if tm < 3:
                add64(k, 48, 48, 32768)

    def pre2(g, ndma):
        k = g.k
        k(f"s_waitcnt vmcnt({min(63, ndma + 8)})")
        fin_modvec(g, GA, 48, False)
        fin_modvec(g, S2, 80, True)

    def epi(g):
        k = g.k
        ACC = g.ACC
        T = g.FREE
        k("s_lshl_b32 s8, s4, 4")
        k("s_add_u32 s8, s8, s5")
        k("s_lshl_b32 s8, s8, 2")
        k("s_add_u32 s8, s8, s3")
        k("s_lshl_b32 s8, s8, 12")
        k(f"s_add_u32 s8, s8, {X2}")
        add64(k, 48, pWS, "s8")
        k("s_lshl_b32 s8, s5, 1")
        k("s_add_u32 s8, s8, s7")
        k("s_lshl_b32 s9, s8, 17")
        k("s_lshl_b32 s10, s4, 13")
        k("s_add_u32 s9, s9, s10")
        k("s_lshl_b32 s10, s6, 12")
        k("s_add_u32 s9, s9, s10")
        k(f"s_add_u32 s9, s9, {Y2}")
        add64(k, 50, pWS, "s9")
        k("s_lshl_b32 s9, s8, 14")
        k("s_lshl_b32 s10, s4, 10")
        k("s_add_u32 s9, s9, s10")
        k("s_lshl_b32 s10, s6, 9")
        k("s_add_u32 s9, s9, s10")
        k(f"s_add_u32 s9, s9, {ST2}")
        add64(k, 52, pWS, "s9")
        k("v_and_b32 v11, 1, v4")
        k("v_lshlrev_b32 v11, 9, v11")
        k("v_lshrrev_b32 v12, 1, v4")
        k("v_lshl_add_u32 v11, v12, 8, v11")
        k("v_lshl_add_u32 v11, v3, 4, v11")
        SS, MM = T + 64, T + 68
        for tm in range(4):
            u = T + 16 * tm
            for tn in range(2):
                for d in range(2):
                    unpack(k, u + 4 * tn + 2 * d, u + 4 * tn + 2 * d + 1, XR + 4 * tm + 2 * tn + d)
            for e in range(8):
                k(f"v_fmac_f32 v{u+e}, v{GA+e}, v{ACC + 8*tm + e}")
            for d in range(4):
                k(f"v_cvt_pk_bf16_f32 v{u+8+d}, v{u+2*d}, v{u+2*d+1}")
            k(f"global_store_dwordx4 v2, v[{u+8}:{u+11}], {sp(48)} offset:{1024*tm}")
            for d in range(4):
                unpack(k, u + 2 * d, u + 2 * d + 1, u + 8 + d)
            a = ACC + 8 * tm
            for e in range(8):
                k(f"v_mul_f32 v{a+e}, v{u+e}, v{S2+e}")
            for d in range(4):
                k(f"v_cvt_pk_bf16_f32 v{u+12+d}, v{a+2*d}, v{a+2*d+1}")
            k(f"v_permlane16_swap_b32 v{u+12}, v{u+14}")
            k(f"v_permlane16_swap_b32 v{u+13}, v{u+15}")
            k(f"global_store_dwordx4 v11, v[{u+12}:{u+15}], {sp(50)} offset:{1024*tm}")
            k(f"v_add_f32 v{SS+tm}, v{u}, v{u+1}")
            for e in range(2, 8):
                k(f"v_add_f32 v{SS+tm}, v{SS+tm}, v{u+e}")
        def red(regs):
            for sw in ("v_permlane16_swap_b32", "v_permlane32_swap_b32"):
                for i, r in enumerate(regs):
                    k(f"v_mov_b32 v{T+72+i}, v{r}")
                for i, r in enumerate(regs):
                    k(f"{sw} v{r}, v{T+72+i}")
                for i, r in enumerate(regs):
                    k(f"v_add_f32 v{r}, v{r}, v{T+72+i}")
        red([SS + i for i in range(4)])
        for tm in range(4):
            u = T + 16 * tm
            k(f"v_mul_f32 v{T+72}, {f32(1.0/32)}, v{SS+tm}")
            for e in range(8):
                k(f"v_sub_f32 v{u+e}, v{u+e}, v{T+72}")
            k(f"v_mul_f32 v{MM+tm}, v{u}, v{u}")
            for e in range(1, 8):
                k(f"v_fmac_f32 v{MM+tm}, v{u+e}, v{u+e}")
        red([MM + i for i in range(4)])
        k(f"v_mov_b32 v{T+72}, v{SS}")
        k(f"v_mov_b32 v{T+73}, v{MM}")
        for tm in range(1, 4):
            k(f"v_cmp_eq_u32 vcc, {tm}, v4")
            k(f"v_cndmask_b32 v{T+72}, v{T+72}, v{SS+tm}, vcc")
            k(f"v_cndmask_b32 v{T+73}, v{T+73}, v{MM+tm}, vcc")
        k("v_lshlrev_b32 v12, 3, v1")
        k(f"global_store_dwordx2 v12, v[{T+72}:{T+73}], {sp(52)}")

    return gemm_kernel("oproj_kernel", 4, 2, 2, 4, 2, 2, 6, 32, OFM, WO, 64, 4, 8, 16, 16, pre, pre2, epi, 0, 176)


def down_kernel():
    XR, GB = 144, 160

    def pre(g):
        k = g.k
        k("v_lshlrev_b32 v11, 4, v4")
        load_modvec(g, 5, GB, 48, 11, 48)
        k("s_lshl_b32 s8, s4, 4")
        k("s_add_u32 s8, s8, s5")
        k("s_lshl_b32 s8, s8, 2")
        k("s_add_u32 s8, s8, s3")
        k("s_lshl_b32 s8, s8, 12")
        k(f"s_add_u32 s8, s8, {X2}")
        add64(k, 48, pWS, "s8")
        for tm in range(4):
            k(f"global_load_dwordx4 v[{XR+4*tm}:{XR+4*tm+3}], v2, {sp(48)} offset:{1024*tm}")

    def pre2(g, ndma):
        k = g.k
        k(f"s_waitcnt vmcnt({min(63, ndma + 4)})")
        fin_modvec(g, GB, 48, False)

    def epi(g):
        k = g.k
        ACC, T = g.ACC, g.FREE
        k("s_lshl_b32 s8, s4, 18")
        k("s_lshl_b32 s9, s6, 17")
        k("s_add_u32 s8, s8, s9")
        k("s_lshl_b32 s9, s5, 7")
        k("s_add_u32 s8, s8, s9")
        k("s_lshl_b32 s9, s7, 6")
        k("s_add_u32 s8, s8, s9")
        add64(k, 48, pOUT, "s8")
        k("v_and_b32 v11, 1, v4")
        k("v_lshlrev_b32 v11, 5, v11")
        k("v_lshrrev_b32 v12, 1, v4")
        k("v_lshl_add_u32 v11, v12, 4, v11")
        k("v_lshl_add_u32 v11, v3, 11, v11")
        for tm in range(4):
            u = T + 16 * tm
            for d in range(4):
                unpack(k, u + 2 * d, u + 2 * d + 1, XR + 4 * tm + d)
            for e in range(8):
                k(f"v_fmac_f32 v{u+e}, v{GB+e}, v{ACC + 8*tm + e}")
            for d in range(4):
                k(f"v_cvt_pk_bf16_f32 v{u+8+d}, v{u+2*d}, v{u+2*d+1}")
            k(f"v_permlane16_swap_b32 v{u+8}, v{u+10}")
            k(f"v_permlane16_swap_b32 v{u+9}, v{u+11}")
            k(f"global_store_dwordx4 v11, v[{u+8}:{u+11}], {sp(48)}")
            if tm < 3:
                add64(k, 48, 48, 32768)

    return gemm_kernel("down_kernel", 4, 2, 2, 4, 2, 2, 6, 112, ACT, WD, 64, 4, 8, 16, 16, pre, pre2, epi, 0, 176)


def gateup_kernel():
    P = 128
    C0 = -2.0 * (2.0 / 3.141592653589793) ** 0.5 * LOG2E
    C1 = C0 * 0.044715

    def pre(g):
        k = g.k
        k("s_cmp_ge_u32 s3, 4")
        k("s_cbranch_scc1 gateup_pre_ut")
        k("v_lshlrev_b32 v11, 3, v0")
        k("s_lshl_b32 s8, s4, 11")
        k(f"s_add_u32 s8, s8, {ST2}")
        add64(k, 48, pWS, "s8")
        for i in range(32):
            k(f"global_load_dwordx2 v[{P+2*i}:{P+2*i+1}], v11, {sp(48)}")
            if i < 31:
                add64(k, 48, 48, 16384)
        k("s_branch gateup_pre_done")
        k.label("gateup_pre_ut")
        k("v_and_b32 v11, 255, v0")
        k("v_min_u32 v11, 223, v11")
        k("v_lshlrev_b32 v11, 3, v11")
        k("s_mul_i32 s8, s5, 1792")
        k(f"s_add_u32 s8, s8, {UTP}")
        add64(k, 48, pWS, "s8")
        for p in range(4):
            k(f"global_load_dwordx2 v[{P+2*p}:{P+2*p+1}], v11, {sp(48)}")
            if p < 3:
                add64(k, 48, 48, 448 * 128)
        k.label("gateup_pre_done")

    def pre2(g, ndma):
        k = g.k
        k(f"s_waitcnt vmcnt({min(63, ndma)})")
        k("s_cmp_ge_u32 s3, 4")
        k("s_cbranch_scc1 gateup_p2_ut")
        k(f"v_add_f32 v12, v{P}, v{P+2}")
        k(f"v_add_f32 v13, v{P+1}, v{P+3}")
        for i in range(2, 32):
            k(f"v_add_f32 v12, v12, v{P+2*i}")
            k(f"v_add_f32 v13, v13, v{P+2*i+1}")
        k(f"v_mul_f32 v12, {f32(1.0/1024)}, v12")
        k(f"v_mul_f32 v14, {f32(-32.0)}, v12")
        k("v_mov_b32 v15, 0")
        for i in range(32):
            k(f"v_add_f32 v{P+2*i}, v{P+2*i}, v14")
        for i in range(32):
            k(f"v_fmac_f32 v15, v{P+2*i}, v{P+2*i}")
        k(f"v_fmac_f32 v13, {f32(1.0/32)}, v15")
        k(f"v_mul_f32 v13, {f32(1.0/1024)}, v13")
        round_bf16(k, 13, 13)
        k(f"v_add_f32 v13, {f32(1e-5)}, v13")
        round_bf16(k, 13, 13)
        k("v_sqrt_f32 v13, v13")
        round_bf16(k, 13, 13)
        k("v_rcp_f32 v14, v13")
        round_bf16(k, 12, 12)
        k("v_mul_f32 v15, v14, v12")
        k("v_sub_f32 v15, 0, v15")
        k(f"v_add_u32 v11, {g.RING}, v11")
        k("ds_write_b64 v11, v[14:15]")
        k("s_branch gateup_p2_done")
        k.label("gateup_p2_ut")
        k(f"v_add_f32 v12, v{P}, v{P+2}")
        k(f"v_add_f32 v13, v{P+1}, v{P+3}")
        k(f"v_add_f32 v14, v{P+4}, v{P+6}")
        k(f"v_add_f32 v15, v{P+5}, v{P+7}")
        k("v_add_f32 v12, v12, v14")
        k("v_add_f32 v13, v13, v15")
        k(f"v_add_u32 v11, {g.RING + 2048}, v11")
        k("ds_write_b64 v11, v[12:13]")
        k.label("gateup_p2_done")
        k("s_waitcnt lgkmcnt(0)")

    def epi(g):
        k = g.k
        ACC, T = g.ACC, g.FREE
        RS = T
        UT = T + 8
        W = T + 24
        k("s_lshl_b32 s8, s6, 9")
        k(f"s_add_u32 s8, s8, {g.RING}")
        k("v_lshlrev_b32 v11, 3, v3")
        k("v_add_u32 v11, s8, v11")
        for tm in range(4):
            k(f"ds_read_b64 v[{RS+2*tm}:{RS+2*tm+1}], v11 offset:{128*tm}")
        k("s_mul_i32 s8, s7, 896")
        k(f"s_add_u32 s8, s8, {g.RING + 2048}")
        k("v_lshlrev_b32 v12, 4, v4")
        k("v_add_u32 v12, s8, v12")
        k("v_lshrrev_b32 v13, 1, v4")
        k("v_lshlrev_b32 v13, 10, v13")
        k("v_lshl_add_u32 v13, v3, 4, v13")
        k("v_and_b32 v14, 1, v4")
        k("v_lshl_add_u32 v13, v14, 3, v13")
        k("s_mul_i32 s8, s5, 14")
        k("s_mul_i32 s9, s7, 7")
        k("s_add_u32 s8, s8, s9")
        k("s_lshl_b32 s9, s4, 14")
        k("s_lshl_b32 s10, s6, 12")
        k("s_add_u32 s9, s9, s10")
        k(f"s_add_u32 s9, s9, {ACT}")
        k(f"s_mov_b32 s54, {f32(C0)}")
        k(f"s_mov_b32 s55, {f32(C1)}")

        def rdut(tn):
            u = UT + 8 * (tn & 1)
            k(f"ds_read_b128 v[{u}:{u+3}], v12 offset:{128*tn}")
            k(f"ds_read_b128 v[{u+4}:{u+7}], v12 offset:{128*tn+64}")
        rdut(0)
        for tn in range(7):
            if tn < 6:
                rdut(tn + 1)
                k("s_waitcnt lgkmcnt(2)")
            else:
                k("s_waitcnt lgkmcnt(0)")
            u = UT + 8 * (tn & 1)
            k(f"s_add_u32 s10, s8, {tn}")
            k("s_lshr_b32 s11, s10, 2")
            k("s_lshl_b32 s11, s11, 17")
            k("s_and_b32 s10, s10, 3")
            k("s_lshl_b32 s10, s10, 8")
            k("s_add_u32 s10, s10, s11")
            k("s_add_u32 s10, s10, s9")
            add64(k, 48 + 2 * (tn & 1), pWS, "s10")
            for tm in range(4):
                c = ACC + 4 * (tm * 7 + tn)
                r = RS + 2 * tm
                for h in range(2):
                    w = W + 2 * h
                    k(f"v_pk_fma_f32 v[{w}:{w+1}], v[{u+2*h}:{u+2*h+1}], v[{r}:{r+1}], v[{u+4+2*h}:{u+5+2*h}] op_sel:[0,1,0] op_sel_hi:[1,1,1]")
                for h in range(2):
                    w = W + 2 * h
                    k(f"v_pk_fma_f32 v[{c+2*h}:{c+2*h+1}], v[{c+2*h}:{c+2*h+1}], v[{r}:{r+1}], v[{w}:{w+1}] op_sel_hi:[1,0,1]")
            for tp in range(2):
                a = ACC + 4 * ((2 * tp) * 7 + tn)
                b = ACC + 4 * ((2 * tp + 1) * 7 + tn)
                for e in range(4):
                    k(f"v_permlane32_swap_b32 v{a+e}, v{b+e}")
            for tp in range(2):
                a = ACC + 4 * ((2 * tp) * 7 + tn)
                w = W + 4 + 4 * tp
                for e in range(4):
                    k(f"v_mul_f32 v{w+e}, v{a+e}, v{a+e}")
                for e in range(4):
                    k(f"v_fma_f32 v{w+e}, v{w+e}, s55, v{15}") if False else k(f"v_mul_f32 v{w+e}, s55, v{w+e}")
                for e in range(4):
                    k(f"v_add_f32 v{w+e}, s54, v{w+e}")
                for e in range(4):
                    k(f"v_mul_f32 v{w+e}, v{w+e}, v{a+e}")
            for tp in range(2):
                w = W + 4 + 4 * tp
                for e in range(4):
                    k(f"v_exp_f32 v{w+e}, v{w+e}")
            for tp in range(2):
                w = W + 4 + 4 * tp
                a = ACC + 4 * ((2 * tp) * 7 + tn)
                b = ACC + 4 * ((2 * tp + 1) * 7 + tn)
                for e in range(4):
                    k(f"v_add_f32 v{w+e}, 1.0, v{w+e}")
                for e in range(4):
                    k(f"v_mul_f32 v{a+e}, v{a+e}, v{b+e}")
            for tp in range(2):
                w = W + 4 + 4 * tp
                for e in range(4):
                    k(f"v_rcp_f32 v{w+e}, v{w+e}")
            for tp in range(2):
                w = W + 4 + 4 * tp
                a = ACC + 4 * ((2 * tp) * 7 + tn)
                b = ACC + 4 * ((2 * tp + 1) * 7 + tn)
                for e in range(4):
                    k(f"v_mul_f32 v{a+e}, v{a+e}, v{w+e}")
                k(f"v_cvt_pk_bf16_f32 v{b}, v{a}, v{a+1}")
                k(f"v_cvt_pk_bf16_f32 v{b+1}, v{a+2}, v{a+3}")
                k(f"global_store_dwordx2 v13, v[{b}:{b+1}], {sp(48 + 2*(tn & 1))} offset:{2048*tp}")

    return gemm_kernel("gateup_kernel", 8, 4, 2, 4, 7, 1, 5, 32, Y2, WGU, 448, 4, 8, 8, 32, pre, pre2, epi, 4096, 224)
```

```python
from common import *


def silu_pack(k, src, dst, t):
    for i in range(4):
        unpack(k, t + 2 * i, t + 2 * i + 1, src + i)
    for i in range(8):
        k(f"v_mul_f32 v{t+8+i}, {f32(-LOG2E)}, v{t+i}")
    for i in range(8):
        k(f"v_exp_f32 v{t+8+i}, v{t+8+i}")
    for i in range(8):
        k(f"v_add_f32 v{t+8+i}, 1.0, v{t+8+i}")
    for i in range(8):
        k(f"v_rcp_f32 v{t+8+i}, v{t+8+i}")
    for i in range(8):
        k(f"v_mul_f32 v{t+i}, v{t+i}, v{t+8+i}")
    for i in range(4):
        k(f"v_cvt_pk_bf16_f32 v{dst+i}, v{t+2*i}, v{t+2*i+1}")


def mod_item(k, s_item, s_wave, s_base, vlane, last_label):
    vo = [4, 5, 6, 7]
    va = [8, 9, 10, 11]
    k(f"s_lshr_b32 s44, s{s_item}, 2")
    k(f"s_and_b32 s45, s{s_item}, 3")
    k(f"s_lshl_b32 s46, s45, 8")
    k(f"s_lshl_b32 s47, s{s_wave}, 6")
    k(f"s_add_u32 s46, s46, s47")
    k(f"s_mul_i32 s47, s46, 12288")
    k(f"s_lshl_b32 s48, s44, 7")
    k(f"s_add_u32 s47, s47, s48")
    unit_dma_offsets(k, vlane, 12288, vo, (12, 13))
    k(f"v_lshrrev_b32 v12, 4, v{vlane}")
    k(f"v_lshlrev_b32 v12, 4, v12")
    k(f"s_lshl_b32 s48, s46, 1")
    k(f"v_add_u32 v12, s48, v12")
    k("s_waitcnt lgkmcnt(0)")
    k(f"global_load_dwordx4 v[16:19], v12, {sp(pC)}")
    k(f"global_load_dwordx4 v[20:23], v12, {sp(pC)} offset:64")
    add64(k, 50, pWMOD, "s47")
    add64(k, 52, 50, 32 * 12288)
    unit_dma(k, 50, 52, vo, vo, s_base, 54)
    unit_tr_addrs(k, vlane, s_base, va, (12, 13, 14))
    k("s_waitcnt vmcnt(8)")
    silu_pack(k, 16, 24, 32)
    silu_pack(k, 20, 28, 32)
    k("s_waitcnt vmcnt(0)")
    unit_tr_read(k, va, 32)
    k("s_waitcnt lgkmcnt(0)")
    for t in range(4):
        k(f"v_mfma_f32_16x16x32_bf16 v[{64+4*t}:{67+4*t}], v[{32+4*t}:{35+4*t}], v[24:27], 0")
    for t in range(4):
        k(f"v_mfma_f32_16x16x32_bf16 v[{64+4*t}:{67+4*t}], v[{48+4*t}:{51+4*t}], v[28:31], v[{64+4*t}:{67+4*t}]")
    k(f"v_lshrrev_b32 v12, 4, v{vlane}")
    k(f"v_lshlrev_b32 v12, 4, v12")
    k(f"v_add_u32 v12, s{s_base}, v12")
    for t in range(4):
        k(f"ds_write_b128 v12, v[{64+4*t}:{67+4*t}] offset:{64*t}")
    k("s_waitcnt lgkmcnt(0)")
    k("s_barrier")
    k(f"s_cmp_lg_u32 s{s_wave}, 0")
    k(f"s_cbranch_scc1 {last_label}")
    k(f"v_lshlrev_b32 v12, 2, v{vlane}")
    for w in range(4):
        k(f"ds_read_b32 v{16+w}, v12 offset:{8192*w}")
    k(f"s_mul_i32 s45, s45, 24576")
    k(f"s_lshl_b32 s44, s44, 8")
    k(f"s_add_u32 s44, s44, s45")
    k(f"s_add_u32 s44, s44, {MODP}")
    add64(k, 50, pWS, "s44")
    k("s_waitcnt lgkmcnt(0)")
    k("v_add_f32 v16, v16, v17")
    k("v_add_f32 v18, v18, v19")
    k("v_add_f32 v16, v16, v18")
    k(f"global_store_dword v12, v16, {sp(50)}")


def prep_kernel():
    NMOD, NST, NRP = 384, 128, 68
    k = Kernel("prep_kernel", NMOD + NST + NRP, 256, 32768, 96)
    END = "prep_end"
    load_args(k)
    k("v_and_b32 v1, 63, v0")
    k("v_lshrrev_b32 v2, 6, v0")
    k("v_readfirstlane_b32 s3, v2")
    k("s_lshl_b32 s4, s3, 13")
    k(f"s_cmp_ge_u32 s2, {NMOD+NST+NRP}")
    k(f"s_cbranch_scc1 {END}")
    k(f"s_cmp_ge_u32 s2, {NMOD+NST}")
    k("s_cbranch_scc1 prep_repack")
    k(f"s_cmp_ge_u32 s2, {NMOD}")
    k("s_cbranch_scc1 prep_stats")
    mod_item(k, 2, 3, 4, 1, END)
    k("s_endpgm")
    k.label("prep_stats")
    k(f"s_sub_u32 s5, s2, {NMOD}")
    k("s_lshl_b32 s5, s5, 4")
    k("s_lshl_b32 s6, s3, 2")
    k("s_add_u32 s5, s5, s6")
    k("s_lshl_b32 s6, s5, 11")
    k("v_lshlrev_b32 v2, 4, v1")
    k("v_add_u32 v3, 0x1000, v2")
    k("s_waitcnt lgkmcnt(0)")
    add64(k, 44, pX, "s6")
    for i in range(4):
        for h in range(2):
            k(f"global_load_dwordx4 v[{4+8*i+4*h}:{7+8*i+4*h}], v{2+(i>>1)}, {sp(44)} offset:{(i&1)*2048+h*1024}")
    k("s_lshl_b32 s6, s5, 3")
    k(f"s_add_u32 s6, s6, {ST1}")
    add64(k, 46, pWS, "s6")
    for pair in range(2):
        k(f"s_waitcnt vmcnt({4*(1-pair)})")
        rows = [2 * pair, 2 * pair + 1]
        for n, i in enumerate(rows):
            b = 36 + 16 * n
            for d in range(8):
                unpack(k, b + 2 * d, b + 2 * d + 1, 4 + 8 * i + d)
        for n in range(2):
            b = 36 + 16 * n
            k(f"v_add_f32 v{70+n}, v{b}, v{b+1}")
        for d in range(2, 16):
            for n in range(2):
                b = 36 + 16 * n
                k(f"v_add_f32 v{70+n}, v{70+n}, v{b+d}")
        wave_allreduce(k, [70, 71], [72, 73])
        for n in range(2):
            k(f"v_mul_f32 v{70+n}, {f32(1.0/1024)}, v{70+n}")
        for d in range(16):
            for n in range(2):
                b = 36 + 16 * n
                k(f"v_sub_f32 v{b+d}, v{b+d}, v{70+n}")
        for n in range(2):
            b = 36 + 16 * n
            k(f"v_mul_f32 v{74+n}, v{b}, v{b}")
        for d in range(1, 16):
            for n in range(2):
                b = 36 + 16 * n
                k(f"v_fmac_f32 v{74+n}, v{b+d}, v{b+d}")
        wave_allreduce(k, [74, 75], [72, 73])
        for n in range(2):
            k(f"v_mul_f32 v{74+n}, {f32(1.0/1024)}, v{74+n}")
            round_bf16(k, 74 + n, 74 + n)
            k(f"v_add_f32 v{74+n}, {f32(1e-5)}, v{74+n}")
            round_bf16(k, 74 + n, 74 + n)
            k(f"v_sqrt_f32 v{74+n}, v{74+n}")
            round_bf16(k, 74 + n, 74 + n)
            k(f"v_rcp_f32 v{81+4*pair+2*n}, v{74+n}")
            round_bf16(k, 80 + 4 * pair + 2 * n, 70 + n)
    k("v_mov_b32 v2, 0")
    k("s_mov_b64 exec, 1")
    k(f"global_store_dwordx4 v2, v[80:83], {sp(46)}")
    k(f"global_store_dwordx4 v2, v[84:87], {sp(46)} offset:16")
    k("s_endpgm")
    k.label("prep_repack")
    vo = [4, 5, 6, 7]
    va = [8, 9, 10, 11]
    k(f"s_sub_u32 s5, s2, {NMOD+NST}")
    k("s_lshl_b32 s5, s5, 2")
    k("s_add_u32 s5, s5, s3")
    k("s_and_b32 s6, s5, 15")
    k("s_lshr_b32 s7, s5, 4")
    k("s_mul_i32 s8, s6, 136")
    k("s_lshl_b32 s9, s7, 2")
    k("s_add_u32 s8, s8, s9")
    k("s_lshl_b32 s8, s8, 10")
    k(f"s_add_u32 s8, s8, {WQKV}")
    unit_tr_addrs(k, 1, 4, va, (12, 13, 14))
    k("v_lshlrev_b32 v15, 4, v1")
    k("s_cmp_eq_u32 s7, 16")
    k("s_cbranch_scc1 prep_kv")
    unit_dma_offsets(k, 1, 2048, vo, (12, 13))
    k("s_lshl_b32 s9, s6, 17")
    k("s_lshl_b32 s10, s7, 7")
    k("s_add_u32 s9, s9, s10")
    k("s_waitcnt lgkmcnt(0)")
    add64(k, 44, pWQ, "s9")
    add64(k, 46, 44, 32 * 2048)
    unit_dma(k, 44, 46, vo, vo, 4, 54)
    k("s_branch prep_rp2")
    k.label("prep_kv")
    unit_dma_offsets(k, 1, 64, vo, (12, 13))
    k("s_lshl_b32 s9, s6, 12")
    k("s_waitcnt lgkmcnt(0)")
    add64(k, 44, pWK, "s9")
    add64(k, 46, pWV, "s9")
    k("s_sub_u32 s46, s46, 64")
    k("s_subb_u32 s47, s47, 0")
    k("v_and_b32 v12, 4, v1")
    k("v_cmp_ne_u32 vcc, 0, v12")
    k("v_mov_b32 v16, s44")
    k("v_mov_b32 v17, s45")
    k("v_mov_b32 v18, s46")
    k("v_mov_b32 v19, s47")
    k("v_cndmask_b32 v20, v16, v18, vcc")
    k("v_cndmask_b32 v21, v17, v19, vcc")
    k("v_cndmask_b32 v22, v18, v16, vcc")
    k("v_cndmask_b32 v23, v19, v17, vcc")
    for j in range(8):
        b = 20 + 2 * (j & 1)
        k(f"v_add_u32 v12, {(j >> 2)*2048}, v{vo[j & 3]}")
        k(f"v_add_co_u32 v24, vcc, v{b}, v12")
        k(f"v_addc_co_u32 v25, vcc, 0, v{b+1}, vcc")
        k(f"s_add_u32 m0, s4, {j*1024}")
        k("global_load_lds_dwordx4 v[24:25], off")
    k.label("prep_rp2")
    add64(k, 48, pWS, "s8")
    add64(k, 50, 48, 68 * 1024)
    k("s_waitcnt vmcnt(0)")
    unit_tr_read(k, va, 32)
    for i in range(8):
        k(f"s_waitcnt lgkmcnt({14-2*i})")
        k(f"global_store_dwordx4 v15, v[{32+4*i}:{35+4*i}], {sp(48 + 2*(i >> 2))} offset:{(i & 3)*1024}")
    k.label(END)
    k("s_endpgm")
    return k


def ut_bvec(k, vlane, s_kb, dst, t, sb):
    k(f"v_and_b32 v{dst}, 1, v{vlane}")
    k(f"v_lshlrev_b32 v{dst}, 12, v{dst}")
    k(f"v_lshrrev_b32 v{dst+1}, 4, v{vlane}")
    k(f"v_lshlrev_b32 v{dst+1}, 5, v{dst+1}")
    k(f"v_sub_u32 v{dst}, v{dst+1}, v{dst}")
    k(f"v_add_u32 v{dst}, 4096, v{dst}")
    k(f"s_lshl_b32 s{sb}, s{s_kb}, 7")
    k(f"s_add_u32 s{sb}, s{sb}, {MODP + 3072*4}")
    k(f"s_add_u32 s{sb}, s{pWS}, s{sb}")
    k(f"s_addc_u32 s{sb+1}, s{pWS+1}, 0")
    for p in range(4):
        k(f"global_load_dwordx4 v[{t+8*p}:{t+8*p+3}], v{dst}, {sp(sb)}")
        k(f"global_load_dwordx4 v[{t+8*p+4}:{t+8*p+7}], v{dst}, {sp(sb)} offset:16")
        if p < 3:
            add64(k, sb, sb, 24576)


def ut_bvec_finish(k, vlane, dst, t):
    for e in range(8):
        k(f"v_add_f32 v{t+e}, v{t+e}, v{t+8+e}")
        k(f"v_add_f32 v{t+16+e}, v{t+16+e}, v{t+24+e}")
    for e in range(8):
        k(f"v_add_f32 v{t+e}, v{t+e}, v{t+16+e}")
    for e in range(8):
        round_bf16(k, t + e, t + e)
    k(f"v_and_b32 v{t+8}, 1, v{vlane}")
    k(f"v_xor_b32 v{t+8}, 1, v{t+8}")
    k(f"v_cvt_f32_u32 v{t+8}, v{t+8}")
    for e in range(8):
        k(f"v_add_f32 v{t+e}, v{t+e}, v{t+8}")
    for i in range(4):
        k(f"v_cvt_pk_bf16_f32 v{dst+i}, v{t+2*i}, v{t+2*i+1}")


def repack_kernel():
    k = Kernel("repack_kernel", 368, 512, 65536, 112)
    END = "repack_end"
    load_args(k)
    k("v_and_b32 v1, 63, v0")
    k("v_lshrrev_b32 v2, 6, v0")
    k("v_readfirstlane_b32 s3, v2")
    k("s_lshl_b32 s4, s3, 13")
    k("v_lshlrev_b32 v2, 4, v1")
    k("v_add_u32 v3, 0x1000, v2")
    k("s_cmp_ge_u32 s2, 368")
    k(f"s_cbranch_scc1 {END}")
    k("s_cmp_ge_u32 s2, 224")
    k("s_cbranch_scc1 repack_plain")
    voA, voB = [4, 5, 6, 7], [8, 9, 10, 11]
    va = list(range(12, 20))
    k("s_lshr_b32 s5, s2, 2")
    k("s_and_b32 s6, s2, 3")
    k("s_lshl_b32 s7, s6, 3")
    k("s_add_u32 s7, s7, s3")
    unit_dma_offsets(k, 1, 7168, voA, (20, 21))
    for j in range(4):
        k(f"v_xor_b32 v{voB[j]}, 16, v{voA[j]}")
    k("s_mul_i32 s8, s7, 229376")
    k("s_lshl_b32 s9, s5, 7")
    k("s_add_u32 s8, s8, s9")
    k("s_waitcnt lgkmcnt(0)")
    ut_bvec(k, 1, 7, 24, 64, 52)
    add64(k, 44, pWG, "s8")
    add64(k, 46, pWU, "s8")
    unit_dma(k, 44, 46, voA, voB, 4, 54)
    unit_tr_addrs(k, 1, 4, va, (20, 21, 22), gu=True)
    k("s_mul_i32 s8, s7, 448")
    k("s_lshl_b32 s9, s5, 3")
    k("s_add_u32 s8, s8, s9")
    k("s_lshl_b32 s8, s8, 10")
    k(f"s_add_u32 s8, s8, {WGU}")
    add64(k, 48, pWS, "s8")
    k("s_waitcnt vmcnt(8)")
    ut_bvec_finish(k, 1, 24, 64)
    k("s_waitcnt vmcnt(0)")
    unit_tr_read(k, va, 32, gu=True)
    for i in range(8):
        k(f"s_waitcnt lgkmcnt({14-2*i})")
        k(f"global_store_dwordx4 v{2 + (i >> 2)}, v[{32+4*i}:{35+4*i}], {sp(48)} offset:{(i & 3)*1024}")
        k(f"v_mfma_f32_16x16x32_bf16 v[{64+4*i}:{67+4*i}], v[{32+4*i}:{35+4*i}], v[24:27], 0")
    k("v_lshrrev_b32 v20, 4, v1")
    k("v_lshlrev_b32 v20, 4, v20")
    k("v_and_b32 v21, 1, v1")
    k("v_lshl_add_u32 v20, v21, 6, v20")
    k("v_add_u32 v20, s4, v20")
    for i in range(8):
        k(f"ds_write_b128 v20, v[{64+4*i}:{67+4*i}] offset:{128*i}")
    k("s_waitcnt lgkmcnt(0)")
    k("s_barrier")
    k("s_cmp_ge_u32 s3, 4")
    k(f"s_cbranch_scc1 {END}")
    k("v_lshlrev_b32 v20, 2, v0")
    for w in range(8):
        k(f"ds_read_b32 v{32+w}, v20 offset:{8192*w}")
    k("s_mul_i32 s8, s6, 448")
    k("s_lshl_b32 s9, s5, 3")
    k("s_add_u32 s8, s8, s9")
    k("s_lshl_b32 s8, s8, 7")
    k(f"s_add_u32 s8, s8, {UTP}")
    add64(k, 48, pWS, "s8")
    k("s_waitcnt lgkmcnt(0)")
    for a, b in ((32, 33), (34, 35), (36, 37), (38, 39), (32, 34), (36, 38), (32, 36)):
        k(f"v_add_f32 v{a}, v{a}, v{b}")
    k(f"global_store_dword v20, v32, {sp(48)}")
    k("s_endpgm")
    k.label("repack_plain")
    vo, va = [4, 5, 6, 7], [8, 9, 10, 11]
    k("s_sub_u32 s5, s2, 224")
    k("s_lshl_b32 s5, s5, 3")
    k("s_add_u32 s5, s5, s3")
    k("s_waitcnt lgkmcnt(0)")
    k("s_cmp_lt_u32 s5, 256")
    k(f"s_cselect_b32 s44, s{pWO}, s{pWD}")
    k(f"s_cselect_b32 s45, s{pWO+1}, s{pWD+1}")
    k(f"s_mov_b32 s8, {WD}")
    k(f"s_cselect_b32 s8, {WO}, s8")
    k("s_cselect_b32 s9, 0, 256")
    k("s_sub_u32 s5, s5, s9")
    k("s_lshr_b32 s6, s5, 4")
    k("s_and_b32 s7, s5, 15")
    k("s_lshl_b32 s9, s6, 17")
    k("s_lshl_b32 s10, s7, 7")
    k("s_add_u32 s9, s9, s10")
    add64(k, 44, 44, "s9")
    add64(k, 46, 44, 32 * 2048)
    unit_dma_offsets(k, 1, 2048, vo, (12, 13))
    unit_dma(k, 44, 46, vo, vo, 4, 54)
    unit_tr_addrs(k, 1, 4, va, (12, 13, 14))
    k("s_lshl_b32 s9, s6, 17")
    k("s_lshl_b32 s10, s7, 12")
    k("s_add_u32 s8, s8, s9")
    k("s_add_u32 s8, s8, s10")
    add64(k, 48, pWS, "s8")
    add64(k, 50, 48, 65536)
    k("s_waitcnt vmcnt(0)")
    unit_tr_read(k, va, 32)
    for i in range(8):
        k(f"s_waitcnt lgkmcnt({14-2*i})")
        k(f"global_store_dwordx4 v2, v[{32+4*i}:{35+4*i}], {sp(48 + 2*(i >> 2))} offset:{(i & 3)*1024}")
    k.label(END)
    k("s_endpgm")
    return k
```

```python
from common import *

QSCALE = 32 ** -0.5 * LOG2E


def qkv_kernel():
    SLAB = 131072
    k = Kernel("qkv_kernel", 256, 256, SLAB + 8192, 256, nagpr=256)
    END = "qkv_end"
    vm = Cnt(k, "vmcnt", 63)
    lg = Cnt(k, "lgkmcnt", 15)
    stamp(k, 0)
    load_args(k)
    k("v_and_b32 v1, 63, v0")
    k("v_lshrrev_b32 v2, 6, v0")
    k("v_readfirstlane_b32 s3, v2")
    k("s_cmp_ge_u32 s2, 256")
    k(f"s_cbranch_scc1 {END}")
    k("s_and_b32 s4, s2, 7")
    k("s_lshr_b32 s5, s2, 3")
    k("s_lshl_b32 s4, s4, 2")
    k("s_lshr_b32 s6, s5, 3")
    k("s_add_u32 s4, s4, s6")
    k("s_and_b32 s5, s5, 7")
    k("v_lshrrev_b32 v2, 3, v1")
    k("v_and_b32 v3, 7, v1")
    k("v_lshrrev_b32 v4, 5, v1")
    k("v_lshlrev_b32 v4, 12, v4")
    k("v_and_b32 v5, 31, v1")
    k("v_lshl_add_u32 v4, v5, 5, v4")
    k("s_lshl_b32 s6, s3, 10")
    k("v_add_u32 v4, s6, v4")
    k("v_lshlrev_b32 v5, 3, v2")
    k("v_lshlrev_b32 v6, 11, v2")
    k("v_lshl_add_u32 v6, v3, 4, v6")
    k("s_lshl_b32 s6, s3, 9")
    k("v_add_u32 v6, s6, v6")
    k("v_lshlrev_b32 v7, 4, v1")
    k("s_lshl_b32 s6, s5, 3")
    k("s_lshl_b32 s7, s3, 1")
    k("s_add_u32 s6, s6, s7")
    k("s_and_b32 s7, s5, 3")
    k("s_add_u32 s7, s7, 64")
    k("s_sub_u32 s7, s7, s6")
    k("s_lshl_b32 s7, s7, 10")
    k("v_add_u32 v8, s7, v7")
    k("s_lshl_b32 s6, s6, 10")
    k(f"s_add_u32 s6, s6, {WQKV}")
    k("s_lshl_b32 s7, s4, 17")
    k("s_lshl_b32 s8, s4, 9")
    k(f"s_add_u32 s8, s8, {ST1}")
    k("s_waitcnt lgkmcnt(0)")
    add64(k, 44, pWS, MODP)
    add64(k, 46, pWS, "s8")
    add64(k, 48, pX, "s7")
    add64(k, 50, pWS, "s6")
    add64(k, 52, pWS, "s6")
    XD = 128
    STT = 48
    STA = 112
    MP = 16
    for p in range(4):
        k(f"global_load_dwordx4 v[{MP+8*p}:{MP+8*p+3}], v4, {sp(44)}")
        k(f"global_load_dwordx4 v[{MP+8*p+4}:{MP+8*p+7}], v4, {sp(44)} offset:16")
        vm.issue("mp"); vm.issue("mp")
        if p < 3:
            add64(k, 44, 44, 24576)
    for rg in range(8):
        k(f"global_load_dwordx2 v[{STA+2*rg}:{STA+2*rg+1}], v5, {sp(46)} offset:{64*rg}")
        vm.issue("st")
    for rg in range(8):
        for ii in range(4):
            n = rg * 4 + ii
            k(f"global_load_dwordx4 v[{XD+4*n}:{XD+4*n+3}], v6, {sp(48)} offset:{128*ii}")
            vm.issue(("x", n))
        if rg < 7:
            add64(k, 48, 48, 16384)
    wl = [0]

    def wload(cnt):
        for _ in range(cnt):
            i = wl[0]
            if i >= 64:
                return
            kb, tn = i >> 1, i & 1
            k(f"global_load_dwordx4 a[{4*i}:{4*i+3}], v7, {sp(50)} offset:{1024*tn}")
            vm.issue(("w", kb))
            if tn == 1:
                add64(k, 50, 50, 68 * 1024)
            wl[0] += 1
    wload(14)
    k("v_lshrrev_b32 v9, 2, v3")
    k("v_lshlrev_b32 v9, 12, v9")
    k("v_and_b32 v10, 3, v3")
    k("v_lshl_add_u32 v9, v10, 8, v9")
    k("v_xor_b32 v10, v2, v3")
    k("v_lshl_add_u32 v9, v10, 4, v9")
    k("s_lshl_b32 s6, s3, 15")
    k("v_add_u32 v9, s6, v9")
    k("s_lshl_b32 s6, s3, 11")
    k(f"s_add_u32 s6, s6, {SLAB}")
    k("v_lshlrev_b32 v10, 5, v1")
    k("v_add_u32 v10, s6, v10")
    k("v_lshlrev_b32 v11, 5, v3")
    k("v_add_u32 v11, s6, v11")
    stamp(k, 1)
    vm.wait("mp")
    for e in range(8):
        k(f"v_add_f32 v{MP+e}, v{MP+e}, v{MP+8+e}")
        k(f"v_add_f32 v{MP+16+e}, v{MP+16+e}, v{MP+24+e}")
    for e in range(8):
        k(f"v_add_f32 v{MP+e}, v{MP+e}, v{MP+16+e}")
    for e in range(8):
        round_bf16(k, MP + e, MP + e)
    k(f"v_lshrrev_b32 v{MP+8}, 5, v1")
    k(f"v_cvt_f32_u32 v{MP+8}, v{MP+8}")
    for e in range(8):
        k(f"v_add_f32 v{MP+e}, v{MP+e}, v{MP+8}")
    for e in range(8):
        round_bf16(k, MP + e, MP + e)
    k(f"ds_write_b128 v10, v[{MP}:{MP+3}]")
    k(f"ds_write_b128 v10, v[{MP+4}:{MP+7}] offset:16")
    k("s_waitcnt lgkmcnt(0)")
    for ii in range(4):
        b = STT + 16 * ii
        k(f"ds_read_b128 v[{b}:{b+3}], v11 offset:{1024+256*ii}")
        k(f"ds_read_b128 v[{b+4}:{b+7}], v11 offset:{1024+256*ii+16}")
        k(f"ds_read_b128 v[{b+8}:{b+11}], v11 offset:{256*ii}")
        k(f"ds_read_b128 v[{b+12}:{b+15}], v11 offset:{256*ii+16}")
    vm.wait("st")
    for rg in range(8):
        a = STA + 2 * rg
        k(f"v_mul_f32 v12, v{a}, v{a+1}")
        k(f"v_mov_b32 v{a}, v{a+1}")
        k(f"v_sub_f32 v{a+1}, 0, v12")
    k("s_waitcnt lgkmcnt(0)")
    stamp(k, 2)
    for rg in range(8):
        for ii in range(4):
            n = rg * 4 + ii
            T = 16 + 12 * (n & 1)
            vm.wait(("x", n))
            x = XD + 4 * n
            for d in range(4):
                unpack(k, T + 2 * d, T + 2 * d + 1, x + d)
            k(f"global_load_dwordx4 v[{x}:{x+3}], v8, {sp(52)}")
            vm.issue(("e", n))
            add64(k, 52, 52, 68 * 1024)
            a = STA + 2 * rg
            for d in range(4):
                k(f"v_pk_fma_f32 v[{T+2*d}:{T+2*d+1}], v[{T+2*d}:{T+2*d+1}], v[{a}:{a+1}], v[{a}:{a+1}] op_sel:[0,0,1] op_sel_hi:[1,0,1]")
            s = STT + 16 * ii
            for d in range(4):
                k(f"v_pk_fma_f32 v[{T+2*d}:{T+2*d+1}], v[{T+2*d}:{T+2*d+1}], v[{s+2*d}:{s+2*d+1}], v[{s+8+2*d}:{s+8+2*d+1}]")
            for d in range(4):
                k(f"v_cvt_pk_bf16_f32 v{T+8+d}, v{T+2*d}, v{T+2*d+1}")
            k(f"ds_write_b128 v9, v[{T+8}:{T+11}] offset:{ii*8192 + (rg >> 1)*1024 + (rg & 1)*128}")
            wload(2)
    wload(64)
    stamp(k, 3)
    k("v_and_b32 v2, 15, v1")
    k("v_lshrrev_b32 v3, 4, v1")
    k("v_xor_b32 v4, v2, v3")
    k("v_lshlrev_b32 v5, 8, v3")
    k("v_lshl_add_u32 v4, v4, 4, v5")
    k("v_xor_b32 v5, 64, v4")
    RA = 40
    for i in range(4):
        k(f"s_add_u32 s6, s3, {i}")
        k("s_and_b32 s6, s6, 3")
        k("s_lshl_b32 s6, s6, 10")
        k(f"v_add_u32 v{RA+2*i}, s6, v4")
        k(f"v_add_u32 v{RA+2*i+1}, s6, v5")
    k("s_waitcnt lgkmcnt(0)")
    k("s_barrier")
    stamp(k, 4)
    AF = [48, 64]
    ACC = 80
    def rd(kb):
        for i in range(4):
            if kb == 16:
                k(f"v_add_u32 v{RA+2*i}, 0x10000, v{RA+2*i}")
                k(f"v_add_u32 v{RA+2*i+1}, 0x10000, v{RA+2*i+1}")
            b = AF[kb & 1] + 4 * i
            k(f"ds_read_b128 v[{b}:{b+3}], v{RA+2*i+(kb & 1)} offset:{(kb & 15)*4096}")
            lg.issue(("a", kb))
    rd(0)
    for kb in range(32):
        if kb < 31:
            rd(kb + 1)
        lg.wait(("a", kb))
        vm.wait(("w", kb))
        vm.wait(("e", kb))
        for i in range(4):
            b = AF[kb & 1] + 4 * i
            for tn in range(2):
                c = ACC + 4 * (2 * i + tn)
                w = 4 * (2 * kb + tn)
                src = "0" if kb == 0 else f"v[{c}:{c+3}]"
                k(f"v_mfma_f32_16x16x32_bf16 v[{c}:{c+3}], a[{w}:{w+3}], v[{b}:{b+3}], {src}")
        c = ACC + 32
        b = AF[kb & 1]
        src = "0" if kb == 0 else f"v[{c}:{c+3}]"
        k(f"v_mfma_f32_16x16x32_bf16 v[{c}:{c+3}], v[{XD+4*kb}:{XD+4*kb+3}], v[{b}:{b+3}], {src}")
    stamp(k, 5)
    k("v_and_b32 v4, 1, v3")
    k("v_lshlrev_b32 v4, 10, v4")
    k("v_lshrrev_b32 v5, 1, v3")
    k("v_lshl_add_u32 v5, v5, 5, v2")
    k("v_lshl_add_u32 v4, v5, 4, v4")
    k("s_lshl_b32 s6, s5, 2")
    k("s_add_u32 s6, s6, s3")
    k("s_lshl_b32 s6, s6, 6")
    k("s_lshl_b32 s7, s4, 1")
    k("s_add_u32 s6, s6, s7")
    k("s_lshl_b32 s6, s6, 11")
    k(f"s_add_u32 s6, s6, {QATT}")
    k(f"s_mov_b32 s9, {f32(QSCALE)}")
    for i in range(4):
        k(f"s_add_u32 s7, s3, {i}")
        k("s_and_b32 s8, s7, 1")
        k("s_lshl_b32 s8, s8, 8")
        k("s_and_b32 s7, s7, 2")
        k("s_lshl_b32 s7, s7, 10")
        k("s_add_u32 s7, s7, s8")
        k("s_add_u32 s7, s7, s6")
        add64(k, 44 + 2 * i, pWS, "s7")
        c = ACC + 8 * i
        for e in range(8):
            k(f"v_mul_f32 v{c+e}, s9, v{c+e}")
        T = 16 + 4 * i
        k(f"v_cvt_pk_bf16_f32 v{T}, v{c}, v{c+1}")
        k(f"v_cvt_pk_bf16_f32 v{T+1}, v{c+2}, v{c+3}")
        k(f"v_cvt_pk_bf16_f32 v{T+2}, v{c+4}, v{c+5}")
        k(f"v_cvt_pk_bf16_f32 v{T+3}, v{c+6}, v{c+7}")
        k(f"v_permlane16_swap_b32 v{T}, v{T+2}")
        k(f"v_permlane16_swap_b32 v{T+1}, v{T+3}")
        k(f"global_store_dwordx4 v4, v[{T}:{T+3}], {sp(44+2*i)}")
    stamp_flush(k, 6, 40, 3)
    k("s_cmp_ge_u32 s5, 4")
    k(f"s_cbranch_scc1 {END}")
    c = ACC + 32
    k(f"v_cvt_pk_bf16_f32 v32, v{c}, v{c+1}")
    k(f"v_cvt_pk_bf16_f32 v33, v{c+2}, v{c+3}")
    k("s_lshl_b32 s6, s4, 1")
    k("s_lshr_b32 s7, s3, 1")
    k("s_add_u32 s6, s6, s7")
    k("s_lshl_b32 s6, s6, 12")
    k(f"s_add_u32 s6, s6, {KV}")
    k("s_and_b32 s7, s3, 1")
    k("s_and_b32 s8, s5, 1")
    k("s_cmp_ge_u32 s5, 2")
    k("s_cbranch_scc1 qkv_v")
    k("s_lshl_b32 s9, s8, 10")
    k("s_lshl_b32 s10, s7, 8")
    k("s_add_u32 s6, s6, s9")
    k("s_add_u32 s6, s6, s10")
    add64(k, 44, pWS, "s6")
    k("v_lshlrev_b32 v5, 4, v5")
    k("v_and_b32 v6, 1, v3")
    k("v_lshl_add_u32 v5, v6, 3, v5")
    k(f"global_store_dwordx2 v5, v[32:33], {sp(44)}")
    unpack(k, 34, 35, 32)
    unpack(k, 36, 37, 33)
    k("v_mul_f32 v34, v34, v34")
    k("v_fmac_f32 v34, v35, v35")
    k("v_fmac_f32 v34, v36, v36")
    k("v_fmac_f32 v34, v37, v37")
    for sw in ("v_permlane16_swap_b32", "v_permlane32_swap_b32"):
        k("v_mov_b32 v35, v34")
        k(f"{sw} v34, v35")
        k("v_add_f32 v34, v34, v35")
    k("s_lshl_b32 s6, s8, 13")
    k("s_lshl_b32 s9, s4, 8")
    k("s_lshl_b32 s10, s3, 6")
    k("s_add_u32 s6, s6, s9")
    k("s_add_u32 s6, s6, s10")
    k(f"s_add_u32 s6, s6, {KN}")
    add64(k, 44, pWS, "s6")
    k("v_lshlrev_b32 v5, 2, v2")
    k(f"global_store_dword v5, v34, {sp(44)}")
    k("s_endpgm")
    k.label("qkv_v")
    k("s_lshl_b32 s9, s7, 10")
    k("s_lshl_b32 s10, s8, 8")
    k("s_add_u32 s6, s6, s9")
    k("s_add_u32 s6, s6, s10")
    k("s_add_u32 s6, s6, 2048")
    add64(k, 44, pWS, "s6")
    k("v_lshlrev_b32 v5, 6, v3")
    k("v_bfe_u32 v6, v2, 2, 1")
    k("v_lshl_add_u32 v5, v6, 9, v5")
    k("v_lshrrev_b32 v6, 3, v2")
    k("v_lshl_add_u32 v5, v6, 3, v5")
    k("v_and_b32 v6, 3, v2")
    k("v_lshl_add_u32 v5, v6, 1, v5")
    k(f"global_store_short v5, v32, {sp(44)}")
    k(f"global_store_short_d16_hi v5, v32, {sp(44)} offset:16")
    k(f"global_store_short v5, v33, {sp(44)} offset:32")
    k(f"global_store_short_d16_hi v5, v33, {sp(44)} offset:48")
    k.label(END)
    k("s_endpgm")
    return k
```

```python
import sys, importlib
sys.path.insert(0, 'dev')
from common import *
import k_prep

def build(kernels, path):
    hdr = open('adaLN_cond__grouped_kv_mqa__geglu_ffn__prompt.s.ref').read().split('\n')
    top = [l for l in hdr if l.startswith(';') and '@launch' not in l and 'Override launch' not in l and 'grid=ceil' not in l]
    top = top[:16]
    s = "\n".join(top) + "\n"
    for k in kernels:
        s += k.launch() + "\n"
    s += '.amdgcn_target "amdgcn-amd-amdhsa--gfx950"\n.text\n'
    seen = []
    for k in kernels:
        if k.name in seen: continue
        seen.append(k.name)
        s += k.text()
    s += '.section .rodata,"a"\n'
    seen = []
    for k in kernels:
        if k.name in seen: continue
        seen.append(k.name)
        s += k.desc()
    open(path, 'w').write(s)

if __name__ == "__main__":
    ks = [k_prep.prep_kernel(), k_prep.repack_kernel()]
    try:
        import k_all
        ks = k_all.kernels()
    except ImportError:
        pass
    out = sys.argv[1] if len(sys.argv) > 1 else 'adaLN_cond__grouped_kv_mqa__geglu_ffn__prompt.s'
    build(ks, out)
    for k in ks:
        print(k.name, k.check_regs(), len(k.ins))
```

```python
import sys
HDR='''.amdgcn_target "amdgcn-amd-amdhsa--gfx950"
.text
'''
def kernel(name, body, iters, nvgpr=128, pre=""):
    s=f'''.globl {name}
.p2align 8
.type {name},@function
{name}:
    s_load_dwordx2 s[4:5], s[0:1], 0
    s_load_dwordx2 s[6:7], s[0:1], 8
    s_waitcnt lgkmcnt(0)
'''
    for i in range(1,nvgpr):
        s+=f"    v_mov_b32 v{i}, 1.0\n"
    s+=pre
    s+=f'''    s_barrier
    s_mov_b32 s10, 0
    s_memtime s[12:13]
    s_waitcnt lgkmcnt(0)
.p2align 6
L_{name}:
{body}
    s_add_u32 s10, s10, 1
    s_cmp_lt_u32 s10, {iters}
    s_cbranch_scc1 L_{name}
    s_nop 15
    s_nop 15
    s_memtime s[14:15]
    s_waitcnt lgkmcnt(0)
    s_sub_u32 s14, s14, s12
    v_lshrrev_b32 v1, 6, v0
    v_lshlrev_b32 v1, 2, v1
    s_lshl_b32 s3, s2, 6
    v_add_u32 v1, s3, v1
    v_mov_b32 v2, s14
    global_store_dword v1, v2, s[6:7]
E_{name}:
    s_endpgm
'''
    return s
def desc(name,nvgpr=128):
    return f'''.section .rodata,"a"
.p2align 6
.amdhsa_kernel {name}
  .amdhsa_next_free_vgpr {nvgpr}
  .amdhsa_next_free_sgpr 32
  .amdhsa_accum_offset {nvgpr}
  .amdhsa_group_segment_fixed_size 0
  .amdhsa_kernarg_size 16
  .amdhsa_user_sgpr_count 2
  .amdhsa_user_sgpr_kernarg_segment_ptr 1
  .amdhsa_system_sgpr_workgroup_id_x 1
.end_amdhsa_kernel
'''
def meta(names,nvgpr=128):
    s=".amdgpu_metadata\n---\namdhsa.version: [1, 2]\namdhsa.kernels:\n"
    for n in names:
        s+=f'''  - .name: {n}
    .symbol: {n}.kd
    .kernarg_segment_size: 16
    .kernarg_segment_align: 8
    .group_segment_fixed_size: 0
    .private_segment_fixed_size: 0
    .wavefront_size: 64
    .sgpr_count: 32
    .vgpr_count: {nvgpr}
    .max_flat_workgroup_size: 1024
    .args:
      - {{.name: kernargs, .size: 16, .offset: 0, .value_kind: by_value}}
'''
    s+="...\n.end_amdgpu_metadata\n"
    return s
ks={}
IT=1000
ks['fma64']="\n".join(f"    v_fma_f32 v{8+i%32}, v{8+i%32}, v1, v2" for i in range(64))
ks['add64']="\n".join(f"    v_add_f32 v{8+i%32}, v{8+i%32}, v1" for i in range(64))
ks['exp64']="\n".join(f"    v_exp_f32 v{8+i%32}, v{40+i%32}" for i in range(64))
ks['cvt64']="\n".join(f"    v_cvt_pk_bf16_f32 v{8+i%32}, v{40+i%32}, v{41+i%32}" for i in range(64))
ks['pkadd64']="\n".join(f"    v_pk_add_f32 v[{8+2*(i%16)}:{9+2*(i%16)}], v[{8+2*(i%16)}:{9+2*(i%16)}], v[2:3]" for i in range(64))
ks['pkfma64']="\n".join(f"    v_pk_fma_f32 v[{8+2*(i%16)}:{9+2*(i%16)}], v[{8+2*(i%16)}:{9+2*(i%16)}], v[2:3], v[4:5]" for i in range(64))
ks['max364']="\n".join(f"    v_max3_f32 v{8+i%32}, v{8+i%32}, v1, v2" for i in range(64))
ks['dot264']="\n".join(f"    v_dot2_f32_bf16 v{8+i%32}, v1, v2, v{8+i%32}" for i in range(64))
ks['dot2c64']="\n".join(f"    v_dot2c_f32_bf16 v{8+i%32}, v1, v2" for i in range(64))
ks['expadd']="\n".join((f"    v_exp_f32 v{8+i%16}, v{40+i%16}\n    v_add_f32 v{24+i%16}, v{24+i%16}, v1") for i in range(32))
ks['mfma8']="\n".join(f"    v_mfma_f32_32x32x16_bf16 v[{64+16*(i%4)}:{79+16*(i%4)}], v[4:7], v[8:11], v[{64+16*(i%4)}:{79+16*(i%4)}]" for i in range(8))
def attn(nm, nexp, ncvt, nadd):
    ops=[]
    for i in range(nexp): ops.append(f"    v_exp_f32 v{12+i%16}, v{40+i%16}")
    for i in range(ncvt): ops.append(f"    v_cvt_pk_bf16_f32 v{28+i%8}, v{40+i%16}, v{41+i%16}")
    for i in range(nadd): ops.append(f"    v_add_f32 v{56+i%4}, v{56+i%4}, v1")
    import random
    random.seed(1)
    random.shuffle(ops)
    out=[]
    per=len(ops)//nm if nm else len(ops)
    for m in range(nm):
        out.append(f"    v_mfma_f32_32x32x16_bf16 v[{64+16*(m%4)}:{79+16*(m%4)}], v[4:7], v[8:11], v[{64+16*(m%4)}:{79+16*(m%4)}]")
        out+=ops[m*per:(m+1)*per] if m<nm-1 else ops[m*per:]
    return "\n".join(out)
ks['add256']="\n".join(f"    v_add_f32 v{8+i%32}, v{8+i%32}, v1" for i in range(256))
ks['fma256']="\n".join(f"    v_fma_f32 v{8+i%32}, v{8+i%32}, v1, v2" for i in range(256))
ks['perm64']="\n".join(f"    v_perm_b32 v{8+i%32}, v{40+i%32}, v{41+i%32}, v1" for i in range(64))
ks['mul64']="\n".join(f"    v_mul_f32 v{8+i%32}, v{40+i%32}, v{41+i%32}" for i in range(64))
ks['max64']="\n".join(f"    v_max_f32 v{8+i%32}, v{40+i%32}, v{41+i%32}" for i in range(64))
ks['and64']="\n".join(f"    v_and_b32 v{8+i%32}, v{40+i%32}, v{41+i%32}" for i in range(64))
ks['lshl64']="\n".join(f"    v_lshlrev_b32 v{8+i%32}, 16, v{41+i%32}" for i in range(64))
ks['mov64']="\n".join(f"    v_mov_b32 v{8+i%32}, v{41+i%32}" for i in range(64))
ks['exp16add16']="\n".join([f"    v_exp_f32 v{8+i%16}, v{40+i%16}" for i in range(16)]+[f"    v_add_f32 v{24+i%16}, v{24+i%16}, v1" for i in range(16)]+[f"    v_exp_f32 v{8+i%16}, v{40+i%16}" for i in range(16)]+[f"    v_add_f32 v{24+i%16}, v{24+i%16}, v1" for i in range(16)])
ks['attnA']=attn(4,16,8,16)
ks['attnB']=attn(6,16,8,0)
ks['attnC']=attn(4,16,8,0)
ks['attnD']=attn(4,16,8,26)
ks['attnE']=attn(5,16,8,0)
if __name__=="__main__":
  s=HDR
  for n,b in ks.items(): s+=kernel(n,b,IT)
  for n in ks: s+=desc(n)
  s+=meta(list(ks))
  open('mb1.s','w').write(s)
  print(" ".join(ks))
```

```python
import sys
from mb_gen import desc, meta, HDR
def dma_kernel(name, NW, nsteps, a_instrs, w_instrs, a_step, w_step, depth, mapfn, barrier, to_vgpr=False, rot=None, flags='', perm=None):
    s=f'''.globl {name}
.p2align 8
.type {name},@function
{name}:
    s_load_dwordx2 s[4:5], s[0:1], 0
    s_load_dwordx2 s[6:7], s[0:1], 8
    s_and_b32 s16, s2, 7          ; xcd
    s_lshr_b32 s17, s2, 3         ; j
{mapfn}
    v_lshrrev_b32 v1, 6, v0
    s_nop 0
    v_readfirstlane_b32 s20, v1
    v_and_b32 v2, 63, v0           ; lane
    s_waitcnt lgkmcnt(0)
    s_add_u32 s8, s4, s18
    s_addc_u32 s9, s5, 0
    s_add_u32 s10, s4, s19
    s_addc_u32 s11, s5, 0
    s_add_u32 s10, s10, 0x2000000
    s_addc_u32 s11, s11, 0
'''
    if rot:
        s+=rot
        s+=f"    s_mul_i32 s21, s31, {a_step}\n    s_add_u32 s8, s8, s21\n    s_addc_u32 s9, s9, 0\n    s_mul_i32 s21, s31, {w_step}\n    s_add_u32 s10, s10, s21\n    s_addc_u32 s11, s11, 0\n    s_sub_u32 s31, {nsteps-1}, s31\n"
    na=len(a_instrs)//NW; nw_=len(w_instrs)//NW
    per=na+nw_
    stage_bytes=per*NW*1024
    for t in range(na):
        s+=f"    s_mov_b32 s21, {a_instrs[t]}\n"
        for w in range(1,NW):
            s+=f"    s_cmp_eq_u32 s20, {w}\n    s_cselect_b32 s21, {a_instrs[w*na+t]}, s21\n"
        if perm:
            s+=perm + f"    s_add_u32 s22, s22, {t}\n    s_and_b32 s22, s22, {na-1}\n    s_sub_u32 s22, s22, {t}\n    s_lshl_b32 s22, s22, 10\n    s_add_u32 s21, s21, s22\n"
        s+=f"    v_lshlrev_b32 v{10+t}, 4, v2\n    v_add_u32 v{10+t}, s21, v{10+t}\n"
    for t in range(nw_):
        cpr,stride=w_instrs[0]
        s+=f"    s_mul_i32 s21, s20, {64*nw_}\n    s_add_u32 s21, s21, {64*t}\n"
        if perm:
            s+=perm + f"    s_add_u32 s22, s22, {t}\n    s_and_b32 s22, s22, {nw_-1}\n    s_sub_u32 s22, s22, {t}\n    s_lshl_b32 s22, s22, 6\n    s_add_u32 s21, s21, s22\n"
        s+=f"    v_add_u32 v3, s21, v2\n"
        magic=(1<<20)//cpr+1
        s+=f"    s_mov_b32 s22, {magic}\n    v_mul_lo_u32 v4, v3, s22\n    v_lshrrev_b32 v4, 20, v4\n"
        s+=f"    v_mul_u32_u24 v5, {cpr}, v4\n    v_sub_u32 v5, v3, v5\n    v_lshlrev_b32 v5, 4, v5\n"
        s+=f"    s_mov_b32 s22, {stride}\n    v_mul_lo_u32 v4, v4, s22\n    v_add_u32 v{30+t}, v4, v5\n"
    s+=f'''    s_mul_i32 s23, s20, {per*1024}
    s_mov_b32 s24, 0
    s_mov_b32 s25, 0     ; step
    s_barrier
    s_memtime s[12:13]
    s_waitcnt lgkmcnt(0)
L_{name}:
'''
    for t in range(per):
        if to_vgpr:
            d=64+4*t
            if t<na: s+=f"    global_load_dwordx4 v[{d}:{d+3}], v{10+t}, s[8:9]\n"
            else: s+=f"    global_load_dwordx4 v[{d}:{d+3}], v{30+t-na}, s[10:11]\n"
        else:
            s+=f"    s_add_u32 s26, s23, s24\n    s_add_u32 m0, s26, {t*1024}\n    s_nop 0\n"
            if t<na: s+=f"    global_load_lds_dwordx4 v{10+t}, s[8:9] {flags}\n"
            else: s+=f"    global_load_lds_dwordx4 v{30+t-na}, s[10:11] {flags}\n"
    NS=depth+1
    WRAP=""
    if rot:
        WRAP=f"    s_cmp_eq_u32 s25, s31\n    s_cselect_b32 s21, {nsteps*a_step}, 0\n    s_cselect_b32 s22, {nsteps*w_step}, 0\n    s_sub_u32 s8, s8, s21\n    s_subb_u32 s9, s9, 0\n    s_sub_u32 s10, s10, s22\n    s_subb_u32 s11, s11, 0\n"
    s+=f'''    s_add_u32 s8, s8, {a_step}
    s_addc_u32 s9, s9, 0
    s_add_u32 s10, s10, {w_step}
    s_addc_u32 s11, s11, 0
{WRAP}    s_add_u32 s24, s24, {stage_bytes}
    s_cmp_eq_u32 s24, {stage_bytes*NS}
    s_cselect_b32 s24, 0, s24
    s_waitcnt vmcnt({min(63,per*depth)})
'''
    if barrier: s+="    s_barrier\n"
    s+=f'''    s_add_u32 s25, s25, 1
    s_cmp_lt_u32 s25, {nsteps}
    s_cbranch_scc1 L_{name}
    s_waitcnt vmcnt(0)
    s_memtime s[14:15]
    s_waitcnt lgkmcnt(0)
    s_sub_u32 s14, s14, s12
    v_lshrrev_b32 v1, 6, v0
    v_lshlrev_b32 v1, 2, v1
    s_lshl_b32 s3, s2, 6
    v_add_u32 v1, s3, v1
    v_mov_b32 v2, s14
    global_store_dword v1, v2, s[6:7]
    s_endpgm
'''
    return s, stage_bytes*NS
ks={}
def map_k6(mx,nx):
    gx_n=16//nx
    import math
    l=int(math.log2(gx_n)); ln=int(math.log2(nx))
    return f'''    s_lshr_b32 s27, s16, {l}
    s_and_b32 s28, s16, {gx_n-1}
    s_mul_i32 s27, s27, {mx}
    s_mul_i32 s28, s28, {nx}
    s_lshr_b32 s29, s17, {ln}
    s_and_b32 s30, s17, {nx-1}
    s_add_u32 s27, s27, s29   ; mb
    s_add_u32 s28, s28, s30   ; nb
    s_mul_i32 s18, s27, 8192
    s_mul_i32 s19, s28, 128
'''
a6=[kb*131072+m*1024 for kb in range(2) for m in range(8)]
w6=[(8,2048)]*8
out=HDR; names=[]
def add(name,*args,**kw):
    global out
    s,l=dma_kernel(name,*args,**kw); out+=s; names.append((name,l))
for NW in (4,8):
  for depth in (2,3,5):
    add(f"k6_w{NW}_d{depth}",NW,56,a6,w6,262144,64*2048,depth,map_k6(4,8),True)
add("k6_w4_d5_m8n4",4,56,a6,w6,262144,64*2048,5,map_k6(8,4),True)
add("k6_w4_d5_m2n16",4,56,a6,w6,262144,64*2048,5,map_k6(2,16),True)
add("k6_w4_d5_nb",4,56,a6,w6,262144,64*2048,5,map_k6(4,8),False)
add("k6_w4_d5_v",4,56,a6,w6,262144,64*2048,5,map_k6(4,8),False,to_vgpr=True)
add("k6_w8_d5_v",8,56,a6,w6,262144,64*2048,5,map_k6(4,8),False,to_vgpr=True)
def map_k5(mx,nx):
    gx_n=32//nx
    import math
    l=int(math.log2(gx_n)); ln=int(math.log2(nx))
    return f'''    s_lshr_b32 s27, s16, {l}
    s_and_b32 s28, s16, {gx_n-1}
    s_mul_i32 s27, s27, {mx}
    s_mul_i32 s28, s28, {nx}
    s_lshr_b32 s29, s17, {ln}
    s_and_b32 s30, s17, {nx-1}
    s_add_u32 s27, s27, s29   ; mb
    s_add_u32 s28, s28, s30   ; nb
    s_mul_i32 s18, s27, 16384
    s_mul_i32 s19, s28, 224
'''
a5=[m*1024 for m in range(16)]
w5=[(14,7168)]*16
for depth in (2,3,4):
    add(f"k5_w8_d{depth}",8,32,a5,w5,131072,64*7168,depth,map_k5(4,8),True)
add("k5_w8_d4_m8n4",8,32,a5,w5,131072,64*7168,4,map_k5(8,4),True)
for n,l in names: out+=desc(n)
out+=meta([n for n,l in names])
open('mb2.s','w').write(out)
with open('mb2.sh','w') as f:
    for n,l in names:
        nw=int(n.split('_w')[1][0])
        f.write(f"./mb_host mb2.co {n} 256 {nw*64} {l} 20 64\n")
out=HDR; names=[]
aL=[i*1024 for i in range(24)]
def map_lin(per_wg_bytes):
    return f"    s_mul_i32 s18, s2, {per_wg_bytes}\n    s_mov_b32 s19, 0\n"
def map_same():
    return f"    s_mov_b32 s18, 0\n    s_mov_b32 s19, 0\n"
wdummy=[]
class L(list): pass
add("lin_same_w4",4,56,aL,[],24576,0,5,map_same(),True)
add("lin_same_w8",8,56,aL,[],24576,0,5,map_same(),True)
add("lin_same_w8_v",8,56,aL,[],24576,0,5,map_same(),False,to_vgpr=True)
add("lin_l1_w8",8,56,aL,[],0,0,5,map_same(),True)
add("lin_l1_w8_v",8,56,aL,[],0,0,5,map_same(),False,to_vgpr=True)
def map_xcd(b): return f"    s_mul_i32 s18, s16, {b}\n    s_mul_i32 s19, s16, 256\n"
add("lin_xcd_w8",8,56,aL,[],24576,0,5,map_xcd(56*24576),True)
add("w128_same_w8",8,56,[],[(8,2048)]*24,0,192*2048//8,5,map_same(),True)
add("w256_same_w8",8,56,[],[(16,2048)]*24,0,96*2048//4,5,map_same(),True)
add("w224_same_w8",8,56,[],[(14,7168)]*24,0,8*7168,5,map_same(),True)
add("w448_same_w8",8,56,[],[(28,7168)]*24,0,8*7168,5,map_same(),True)
add("w64_same_w8",8,56,[],[(4,2048)]*24,0,16*2048,5,map_same(),True)
add("k6_w8_d5",8,56,a6,w6,262144,64*2048,5,map_k6(4,8),True)
for n,l in names: out+=desc(n)
out+=meta([n for n,l in names])
open('mb3.s','w').write(out)
with open('mb3.sh','w') as f:
    for n,l in names:
        nw=int(n.split('_w')[-1][0]) if n.split('_w')[-1][0].isdigit() else int(n.split('_w')[1][0])
        f.write(f"./mb_host mb3.co {n} 256 {nw*64} {l} 20 64\n")
    f.write(f"DUMP=1 ./mb_host mb3.co k6_w8_d5 256 512 147456 20 64\n")
    f.write(f"./mb_host mb3.co lin_same_w8 128 512 147456 20 64\n")
    f.write(f"./mb_host mb3.co lin_same_w8 64 512 147456 20 64\n")
    f.write(f"./mb_host mb3.co lin_same_w8 8 512 147456 20 64\n")
out=HDR; names=[]
add("e0_w8",8,56,a6,w6,262144,64*2048,5,map_k6(4,8),True)
add("e1_w8",8,56,a6,w6,262144,64*2048,5,map_k6(4,8)+"    s_mov_b32 s18, 0\n",True)
add("e2_w8",8,56,a6,w6,262144,64*2048,5,map_k6(2,16)+"    s_mov_b32 s18, 0\n",True)
add("e3_w8",8,56,a6,w6,262144,64*2048,5,map_k6(4,8)+"    s_mov_b32 s19, 0\n",True)
add("e3b_w8",8,56,a6,w6,262144,64*2048,5,map_k6(4,8)+"    s_mov_b32 s19, 0\n    s_mov_b32 s18, 0\n",True)
add("e4_w8",8,56,a6,[],262144,64*2048,5,map_k6(4,8),True)
add("e4b_w8",8,56,a6,[],262144,64*2048,5,map_k6(8,4),True)
add("e4c_w8",8,56,a6,[],262144,64*2048,5,map_k6(16,2),True)
add("e5_w8",8,56,[],w6,262144,64*2048,5,map_k6(4,8),True)
add("e5b_w8",8,56,[],w6,262144,64*2048,5,map_k6(2,16),True)
add("e6_w8",8,56,a6,w6,262144,64*2048,5,map_k6(2,16),True)
add("e7_w8",8,56,a6,w6,262144,64*2048,5,map_k6(8,4),True)
add("e8_w8",8,56,a6,w6,262144,64*2048,5,"    s_lshr_b32 s27, s2, 4\n    s_and_b32 s28, s2, 15\n    s_mul_i32 s18, s27, 8192\n    s_mul_i32 s19, s28, 128\n",True)
for n,l in names: out+=desc(n)
out+=meta([n for n,l in names])
open('mb4.s','w').write(out)
with open('mb4.sh','w') as f:
    for n,l in names:
        f.write(f"./mb_host mb4.co {n} 256 512 {l} 20 64\n")
    f.write(f"DUMP=1 ./mb_host mb4.co e6_w8 256 512 147456 20 64\n")
    f.write(f"DUMP=1 ./mb_host mb4.co e1_w8 256 512 147456 20 64\n")
out=HDR; names=[]
wl=[(64,1024)]*8
def map_k6l(mx,nx): return map_k6(mx,nx).replace("s_mul_i32 s19, s28, 128","s_mul_i32 s19, s28, 8192")
add("l0_w4",4,56,a6,wl,262144,131072,5,map_k6l(4,8),True)
add("l1_w4",4,56,a6,wl,262144,131072,2,map_k6l(4,8),True)
add("l2_w8",8,56,a6,wl,262144,131072,5,map_k6l(4,8),True)
add("l3_w4",4,56,a6,wl,262144,131072,5,map_k6l(8,4),True)
add("l4_w4",4,56,a6,wl,262144,131072,5,map_k6l(2,16),True)
for n,l in names: out+=desc(n)
out+=meta([n for n,l in names])
open('mb5.s','w').write(out)
with open('mb5.sh','w') as f:
    for n,l in names:
        nw=int(n.split('_w')[1][0])
        f.write(f"./mb_host mb5.co {n} 256 {nw*64} {l} 20 64\n")
        f.write(f"COLD=1 ./mb_host mb5.co {n} 256 {nw*64} {l} 20 64\n")
        f.write(f"COLD=2 ./mb_host mb5.co {n} 256 {nw*64} {l} 20 64\n")

out=HDR; names=[]
add("r0_w4",4,56,a6,wl,262144,131072,5,map_k6l(4,8),True)
add("r1_w4",4,56,a6,wl,262144,131072,5,map_k6l(4,8),True,rot="    s_mul_i32 s31, s16, 7\n")
add("r2_w4",4,56,a6,wl,262144,131072,5,map_k6l(4,8),True,rot="    s_mul_i32 s31, s16, 2\n")
add("r3_w4",4,56,a6,wl,262144,131072,5,map_k6l(4,8),True,flags="nt")
add("r4_w4",4,56,a6,wl,262144,131072,5,map_k6l(4,8),True,flags="sc1")
add("r5_w4",4,56,a6,wl,262144,131072,5,map_k6l(4,8),True,flags="sc0")
add("r6_w4",4,56,a6,wl,262144,131072,5,map_k6l(4,8),True,rot="    s_and_b32 s31, s17, 3\n")
add("r7_w4",4,56,a6,wl,262144,131072,5,map_k6l(4,8),True,rot="    s_and_b32 s31, s17, 1\n    s_mul_i32 s31, s31, 3\n")
add("r8_w4",4,56,a6,wl,262144,131072,5,map_k6l(4,8),False)
for n,l in names: out+=desc(n)
out+=meta([n for n,l in names])
open('mb6.s','w').write(out)
with open('mb6.sh','w') as f:
    for n,l in names:
        nw=int(n.split('_w')[1][0])
        f.write(f"./mb_host mb6.co {n} 256 {nw*64} {l} 20 64\n")

out=HDR; names=[]
add("p0_w4",4,56,a6,wl,262144,131072,5,map_k6l(4,8),True)
add("p1_w4",4,56,a6,wl,262144,131072,5,map_k6l(4,8),True,perm="    s_mov_b32 s22, s17\n")
add("p2_w4",4,56,a6,wl,262144,131072,5,map_k6l(4,8),True,perm="    s_add_u32 s22, s17, s20\n")
add("p3_w4",4,56,a6,wl,262144,131072,5,map_k6l(4,8),True,perm="    s_mov_b32 s22, s20\n")
add("p4_w4",4,56,a6,wl,262144,131072,5,map_k6l(4,8),True,perm="    s_lshr_b32 s22, s17, 3\n    s_add_u32 s22, s22, s17\n")
add("p5_w4",4,56,a6,wl,262144+1024,131072+1024,5,map_k6l(4,8),True)
add("p6_w4",4,56,[kb*(131072+512)+m*1024 for kb in range(2) for m in range(8)],wl,262144+1024,131072+1024,5,map_k6l(4,8).replace("s27, 8192","s27, 8320").replace("s28, 8192","s28, 8320"),True)
for n,l in names: out+=desc(n)
out+=meta([n for n,l in names])
open('mb7.s','w').write(out)
with open('mb7.sh','w') as f:
    for n,l in names:
        nw=int(n.split('_w')[1][0])
        f.write(f"./mb_host mb7.co {n} 256 {nw*64} {l} 20 64\n")
out=HDR; names=[]
add("c_lin_w4",4,2,aL,[],24576,0,5,"    s_mul_i32 s18, s2, 49152\n    s_mov_b32 s19, 0\n",False)
add("c_128_w4",4,2,[],[(8,12288)]*24,0,192*12288,5,"    s_mov_b32 s18, 0\n    s_mul_hi_u32 s27, s2, 0x2aaaaab\n    s_mul_i32 s28, s27, 96\n    s_sub_u32 s28, s2, s28\n    s_mul_i32 s19, s27, 4718592\n    s_lshl_b32 s28, s28, 7\n    s_add_u32 s19, s19, s28\n",False)
add("c_256_w4",4,2,[],[(16,12288)]*24,0,96*12288,5,"    s_mov_b32 s18, 0\n    s_mul_hi_u32 s27, s2, 0x5555556\n    s_mul_i32 s28, s27, 48\n    s_sub_u32 s28, s2, s28\n    s_mul_i32 s19, s27, 2359296\n    s_lshl_b32 s28, s28, 8\n    s_add_u32 s19, s19, s28\n",False)
add("c_1k_w4",4,2,[],[(64,12288)]*24,0,24*12288,5,"    s_mov_b32 s18, 0\n    s_mul_hi_u32 s27, s2, 0x15555556\n    s_mul_i32 s28, s27, 12\n    s_sub_u32 s28, s2, s28\n    s_mul_i32 s19, s27, 589824\n    s_lshl_b32 s28, s28, 10\n    s_add_u32 s19, s19, s28\n",False)
for n,l in names: out+=desc(n)
out+=meta([n for n,l in names])
open('mb9.s','w').write(out)
with open('mb9.sh','w') as f:
    for n,l in names:
        f.write(f"./mb_host mb9.co {n} 256 256 {l} 20 64\n")
        f.write(f"COLD=1 ./mb_host mb9.co {n} 256 256 {l} 20 64\n")
```

```python
import sys
from mb_gen import desc, meta, HDR
def dma_kernel(name, NW, nsteps, a_instrs, w_instrs, a_step, w_step, depth, mapfn, barrier, to_vgpr=False, rot=None, flags='', perm=None):
    s=f'''.globl {name}
.p2align 8
.type {name},@function
{name}:
    s_load_dwordx2 s[4:5], s[0:1], 0
    s_load_dwordx2 s[6:7], s[0:1], 8
    s_and_b32 s16, s2, 7          ; xcd
    s_lshr_b32 s17, s2, 3         ; j
{mapfn}
    v_lshrrev_b32 v1, 6, v0
    s_nop 0
    v_readfirstlane_b32 s20, v1
    v_and_b32 v2, 63, v0           ; lane
    s_waitcnt lgkmcnt(0)
    s_add_u32 s8, s4, s18
    s_addc_u32 s9, s5, 0
    s_add_u32 s10, s4, s19
    s_addc_u32 s11, s5, 0
    s_add_u32 s10, s10, 0x2000000
    s_addc_u32 s11, s11, 0
'''
    if rot:
        s+=rot
        s+=f"    s_mul_i32 s21, s31, {a_step}\n    s_add_u32 s8, s8, s21\n    s_addc_u32 s9, s9, 0\n    s_mul_i32 s21, s31, {w_step}\n    s_add_u32 s10, s10, s21\n    s_addc_u32 s11, s11, 0\n    s_sub_u32 s31, {nsteps-1}, s31\n"
    na=len(a_instrs)//NW; nw_=len(w_instrs)//NW
    per=na+nw_
    stage_bytes=per*NW*1024
    for t in range(na):
        s+=f"    s_mov_b32 s21, {a_instrs[t]}\n"
        for w in range(1,NW):
            s+=f"    s_cmp_eq_u32 s20, {w}\n    s_cselect_b32 s21, {a_instrs[w*na+t]}, s21\n"
        if perm:
            s+=perm + f"    s_add_u32 s22, s22, {t}\n    s_and_b32 s22, s22, {na-1}\n    s_sub_u32 s22, s22, {t}\n    s_lshl_b32 s22, s22, 10\n    s_add_u32 s21, s21, s22\n"
        s+=f"    v_lshlrev_b32 v{10+t}, 4, v2\n    v_add_u32 v{10+t}, s21, v{10+t}\n"
    for t in range(nw_):
        cpr,stride=w_instrs[0]
        s+=f"    s_mul_i32 s21, s20, {64*nw_}\n    s_add_u32 s21, s21, {64*t}\n"
        if perm:
            s+=perm + f"    s_add_u32 s22, s22, {t}\n    s_and_b32 s22, s22, {nw_-1}\n    s_sub_u32 s22, s22, {t}\n    s_lshl_b32 s22, s22, 6\n    s_add_u32 s21, s21, s22\n"
        s+=f"    v_add_u32 v3, s21, v2\n"
        magic=(1<<20)//cpr+1
        s+=f"    s_mov_b32 s22, {magic}\n    v_mul_lo_u32 v4, v3, s22\n    v_lshrrev_b32 v4, 20, v4\n"
        s+=f"    v_mul_u32_u24 v5, {cpr}, v4\n    v_sub_u32 v5, v3, v5\n    v_lshlrev_b32 v5, 4, v5\n"
        s+=f"    s_mov_b32 s22, {stride}\n    v_mul_lo_u32 v4, v4, s22\n    v_add_u32 v{30+t}, v4, v5\n"
    s+=f'''    s_mul_i32 s23, s20, {per*1024}
    s_mov_b32 s24, 0
    s_mov_b32 s25, 0     ; step
    s_barrier
    s_memtime s[12:13]
    s_waitcnt lgkmcnt(0)
L_{name}:
'''
    for t in range(per):
        if to_vgpr:
            d=64+4*t
            if t<na: s+=f"    global_load_dwordx4 v[{d}:{d+3}], v{10+t}, s[8:9]\n"
            else: s+=f"    global_load_dwordx4 v[{d}:{d+3}], v{30+t-na}, s[10:11]\n"
        else:
            s+=f"    s_add_u32 s26, s23, s24\n    s_add_u32 m0, s26, {t*1024}\n    s_nop 0\n"
            if t<na: s+=f"    global_load_lds_dwordx4 v{10+t}, s[8:9] {flags}\n"
            else: s+=f"    global_load_lds_dwordx4 v{30+t-na}, s[10:11] {flags}\n"
    NS=depth+1
    WRAP=""
    if rot:
        WRAP=f"    s_cmp_eq_u32 s25, s31\n    s_cselect_b32 s21, {nsteps*a_step}, 0\n    s_cselect_b32 s22, {nsteps*w_step}, 0\n    s_sub_u32 s8, s8, s21\n    s_subb_u32 s9, s9, 0\n    s_sub_u32 s10, s10, s22\n    s_subb_u32 s11, s11, 0\n"
    s+=f'''    s_add_u32 s8, s8, {a_step}
    s_addc_u32 s9, s9, 0
    s_add_u32 s10, s10, {w_step}
    s_addc_u32 s11, s11, 0
{WRAP}    s_add_u32 s24, s24, {stage_bytes}
    s_cmp_eq_u32 s24, {stage_bytes*NS}
    s_cselect_b32 s24, 0, s24
    s_waitcnt vmcnt({min(63,per*depth)})
'''
    if barrier: s+="    s_barrier\n"
    s+=f'''    s_add_u32 s25, s25, 1
    s_cmp_lt_u32 s25, {nsteps}
    s_cbranch_scc1 L_{name}
    s_waitcnt vmcnt(0)
    s_memtime s[14:15]
    s_waitcnt lgkmcnt(0)
    s_sub_u32 s14, s14, s12
    v_lshrrev_b32 v1, 6, v0
    v_lshlrev_b32 v1, 2, v1
    s_lshl_b32 s3, s2, 6
    v_add_u32 v1, s3, v1
    v_mov_b32 v2, s14
    global_store_dword v1, v2, s[6:7]
    s_endpgm
'''
    return s, stage_bytes*NS
ks={}
def map_k6(mx,nx):
    gx_n=16//nx
    import math
    l=int(math.log2(gx_n)); ln=int(math.log2(nx))
    return f'''    s_lshr_b32 s27, s16, {l}
    s_and_b32 s28, s16, {gx_n-1}
    s_mul_i32 s27, s27, {mx}
    s_mul_i32 s28, s28, {nx}
    s_lshr_b32 s29, s17, {ln}
    s_and_b32 s30, s17, {nx-1}
    s_add_u32 s27, s27, s29   ; mb
    s_add_u32 s28, s28, s30   ; nb
    s_mul_i32 s18, s27, 8192
    s_mul_i32 s19, s28, 128
'''
a6=[kb*131072+m*1024 for kb in range(2) for m in range(8)]
w6=[(8,2048)]*8
out=HDR; names=[]
def add(name,*args,**kw):
    global out
    s,l=dma_kernel(name,*args,**kw); out+=s; names.append((name,l))
for NW in (4,8):
  for depth in (2,3,5):
    add(f"k6_w{NW}_d{depth}",NW,56,a6,w6,262144,64*2048,depth,map_k6(4,8),True)
add("k6_w4_d5_m8n4",4,56,a6,w6,262144,64*2048,5,map_k6(8,4),True)
add("k6_w4_d5_m2n16",4,56,a6,w6,262144,64*2048,5,map_k6(2,16),True)
add("k6_w4_d5_nb",4,56,a6,w6,262144,64*2048,5,map_k6(4,8),False)
add("k6_w4_d5_v",4,56,a6,w6,262144,64*2048,5,map_k6(4,8),False,to_vgpr=True)
add("k6_w8_d5_v",8,56,a6,w6,262144,64*2048,5,map_k6(4,8),False,to_vgpr=True)
def map_k5(mx,nx):
    gx_n=32//nx
    import math
    l=int(math.log2(gx_n)); ln=int(math.log2(nx))
    return f'''    s_lshr_b32 s27, s16, {l}
    s_and_b32 s28, s16, {gx_n-1}
    s_mul_i32 s27, s27, {mx}
    s_mul_i32 s28, s28, {nx}
    s_lshr_b32 s29, s17, {ln}
    s_and_b32 s30, s17, {nx-1}
    s_add_u32 s27, s27, s29   ; mb
    s_add_u32 s28, s28, s30   ; nb
    s_mul_i32 s18, s27, 16384
    s_mul_i32 s19, s28, 224
'''
a5=[m*1024 for m in range(16)]
w5=[(14,7168)]*16
for depth in (2,3,4):
    add(f"k5_w8_d{depth}",8,32,a5,w5,131072,64*7168,depth,map_k5(4,8),True)
add("k5_w8_d4_m8n4",8,32,a5,w5,131072,64*7168,4,map_k5(8,4),True)
for n,l in names: out+=desc(n)
out+=meta([n for n,l in names])
open('mb2.s','w').write(out)
with open('mb2.sh','w') as f:
    for n,l in names:
        nw=int(n.split('_w')[1][0])
        f.write(f"./mb_host mb2.co {n} 256 {nw*64} {l} 20 64\n")
out=HDR; names=[]
aL=[i*1024 for i in range(24)]
def map_lin(per_wg_bytes):
    return f"    s_mul_i32 s18, s2, {per_wg_bytes}\n    s_mov_b32 s19, 0\n"
def map_same():
    return f"    s_mov_b32 s18, 0\n    s_mov_b32 s19, 0\n"
wdummy=[]
class L(list): pass
add("lin_same_w4",4,56,aL,[],24576,0,5,map_same(),True)
add("lin_same_w8",8,56,aL,[],24576,0,5,map_same(),True)
add("lin_same_w8_v",8,56,aL,[],24576,0,5,map_same(),False,to_vgpr=True)
add("lin_l1_w8",8,56,aL,[],0,0,5,map_same(),True)
add("lin_l1_w8_v",8,56,aL,[],0,0,5,map_same(),False,to_vgpr=True)
def map_xcd(b): return f"    s_mul_i32 s18, s16, {b}\n    s_mul_i32 s19, s16, 256\n"
add("lin_xcd_w8",8,56,aL,[],24576,0,5,map_xcd(56*24576),True)
add("w128_same_w8",8,56,[],[(8,2048)]*24,0,192*2048//8,5,map_same(),True)
add("w256_same_w8",8,56,[],[(16,2048)]*24,0,96*2048//4,5,map_same(),True)
add("w224_same_w8",8,56,[],[(14,7168)]*24,0,8*7168,5,map_same(),True)
add("w448_same_w8",8,56,[],[(28,7168)]*24,0,8*7168,5,map_same(),True)
add("w64_same_w8",8,56,[],[(4,2048)]*24,0,16*2048,5,map_same(),True)
add("k6_w8_d5",8,56,a6,w6,262144,64*2048,5,map_k6(4,8),True)
for n,l in names: out+=desc(n)
out+=meta([n for n,l in names])
open('mb3.s','w').write(out)
with open('mb3.sh','w') as f:
    for n,l in names:
        nw=int(n.split('_w')[-1][0]) if n.split('_w')[-1][0].isdigit() else int(n.split('_w')[1][0])
        f.write(f"./mb_host mb3.co {n} 256 {nw*64} {l} 20 64\n")
    f.write(f"DUMP=1 ./mb_host mb3.co k6_w8_d5 256 512 147456 20 64\n")
    f.write(f"./mb_host mb3.co lin_same_w8 128 512 147456 20 64\n")
    f.write(f"./mb_host mb3.co lin_same_w8 64 512 147456 20 64\n")
    f.write(f"./mb_host mb3.co lin_same_w8 8 512 147456 20 64\n")
out=HDR; names=[]
add("e0_w8",8,56,a6,w6,262144,64*2048,5,map_k6(4,8),True)
add("e1_w8",8,56,a6,w6,262144,64*2048,5,map_k6(4,8)+"    s_mov_b32 s18, 0\n",True)
add("e2_w8",8,56,a6,w6,262144,64*2048,5,map_k6(2,16)+"    s_mov_b32 s18, 0\n",True)
add("e3_w8",8,56,a6,w6,262144,64*2048,5,map_k6(4,8)+"    s_mov_b32 s19, 0\n",True)
add("e3b_w8",8,56,a6,w6,262144,64*2048,5,map_k6(4,8)+"    s_mov_b32 s19, 0\n    s_mov_b32 s18, 0\n",True)
add("e4_w8",8,56,a6,[],262144,64*2048,5,map_k6(4,8),True)
add("e4b_w8",8,56,a6,[],262144,64*2048,5,map_k6(8,4),True)
add("e4c_w8",8,56,a6,[],262144,64*2048,5,map_k6(16,2),True)
add("e5_w8",8,56,[],w6,262144,64*2048,5,map_k6(4,8),True)
add("e5b_w8",8,56,[],w6,262144,64*2048,5,map_k6(2,16),True)
add("e6_w8",8,56,a6,w6,262144,64*2048,5,map_k6(2,16),True)
add("e7_w8",8,56,a6,w6,262144,64*2048,5,map_k6(8,4),True)
add("e8_w8",8,56,a6,w6,262144,64*2048,5,"    s_lshr_b32 s27, s2, 4\n    s_and_b32 s28, s2, 15\n    s_mul_i32 s18, s27, 8192\n    s_mul_i32 s19, s28, 128\n",True)
for n,l in names: out+=desc(n)
out+=meta([n for n,l in names])
open('mb4.s','w').write(out)
with open('mb4.sh','w') as f:
    for n,l in names:
        f.write(f"./mb_host mb4.co {n} 256 512 {l} 20 64\n")
    f.write(f"DUMP=1 ./mb_host mb4.co e6_w8 256 512 147456 20 64\n")
    f.write(f"DUMP=1 ./mb_host mb4.co e1_w8 256 512 147456 20 64\n")
out=HDR; names=[]
wl=[(64,1024)]*8
def map_k6l(mx,nx): return map_k6(mx,nx).replace("s_mul_i32 s19, s28, 128","s_mul_i32 s19, s28, 8192")
add("l0_w4",4,56,a6,wl,262144,131072,5,map_k6l(4,8),True)
add("l1_w4",4,56,a6,wl,262144,131072,2,map_k6l(4,8),True)
add("l2_w8",8,56,a6,wl,262144,131072,5,map_k6l(4,8),True)
add("l3_w4",4,56,a6,wl,262144,131072,5,map_k6l(8,4),True)
add("l4_w4",4,56,a6,wl,262144,131072,5,map_k6l(2,16),True)
for n,l in names: out+=desc(n)
out+=meta([n for n,l in names])
open('mb5.s','w').write(out)
with open('mb5.sh','w') as f:
    for n,l in names:
        nw=int(n.split('_w')[1][0])
        f.write(f"./mb_host mb5.co {n} 256 {nw*64} {l} 20 64\n")
        f.write(f"COLD=1 ./mb_host mb5.co {n} 256 {nw*64} {l} 20 64\n")
        f.write(f"COLD=2 ./mb_host mb5.co {n} 256 {nw*64} {l} 20 64\n")

out=HDR; names=[]
add("r0_w4",4,56,a6,wl,262144,131072,5,map_k6l(4,8),True)
add("r1_w4",4,56,a6,wl,262144,131072,5,map_k6l(4,8),True,rot="    s_mul_i32 s31, s16, 7\n")
add("r2_w4",4,56,a6,wl,262144,131072,5,map_k6l(4,8),True,rot="    s_mul_i32 s31, s16, 2\n")
add("r3_w4",4,56,a6,wl,262144,131072,5,map_k6l(4,8),True,flags="nt")
add("r4_w4",4,56,a6,wl,262144,131072,5,map_k6l(4,8),True,flags="sc1")
add("r5_w4",4,56,a6,wl,262144,131072,5,map_k6l(4,8),True,flags="sc0")
add("r6_w4",4,56,a6,wl,262144,131072,5,map_k6l(4,8),True,rot="    s_and_b32 s31, s17, 3\n")
add("r7_w4",4,56,a6,wl,262144,131072,5,map_k6l(4,8),True,rot="    s_and_b32 s31, s17, 1\n    s_mul_i32 s31, s31, 3\n")
add("r8_w4",4,56,a6,wl,262144,131072,5,map_k6l(4,8),False)
for n,l in names: out+=desc(n)
out+=meta([n for n,l in names])
open('mb6.s','w').write(out)
with open('mb6.sh','w') as f:
    for n,l in names:
        nw=int(n.split('_w')[1][0])
        f.write(f"./mb_host mb6.co {n} 256 {nw*64} {l} 20 64\n")

out=HDR; names=[]
add("p0_w4",4,56,a6,wl,262144,131072,5,map_k6l(4,8),True)
add("p1_w4",4,56,a6,wl,262144,131072,5,map_k6l(4,8),True,perm="    s_mov_b32 s22, s17\n")
add("p2_w4",4,56,a6,wl,262144,131072,5,map_k6l(4,8),True,perm="    s_add_u32 s22, s17, s20\n")
add("p3_w4",4,56,a6,wl,262144,131072,5,map_k6l(4,8),True,perm="    s_mov_b32 s22, s20\n")
add("p4_w4",4,56,a6,wl,262144,131072,5,map_k6l(4,8),True,perm="    s_lshr_b32 s22, s17, 3\n    s_add_u32 s22, s22, s17\n")
add("p5_w4",4,56,a6,wl,262144+1024,131072+1024,5,map_k6l(4,8),True)
add("p6_w4",4,56,[kb*(131072+512)+m*1024 for kb in range(2) for m in range(8)],wl,262144+1024,131072+1024,5,map_k6l(4,8).replace("s27, 8192","s27, 8320").replace("s28, 8192","s28, 8320"),True)
for n,l in names: out+=desc(n)
out+=meta([n for n,l in names])
open('mb7.s','w').write(out)
with open('mb7.sh','w') as f:
    for n,l in names:
        nw=int(n.split('_w')[1][0])
        f.write(f"./mb_host mb7.co {n} 256 {nw*64} {l} 20 64\n")
out=HDR; names=[]
add("c_lin_w4",4,2,aL,[],24576,0,5,"    s_mul_i32 s18, s2, 49152\n    s_mov_b32 s19, 0\n",False)
add("c_128_w4",4,2,[],[(8,12288)]*24,0,192*12288,5,"    s_mov_b32 s18, 0\n    s_mul_hi_u32 s27, s2, 0x2aaaaab\n    s_mul_i32 s28, s27, 96\n    s_sub_u32 s28, s2, s28\n    s_mul_i32 s19, s27, 4718592\n    s_lshl_b32 s28, s28, 7\n    s_add_u32 s19, s19, s28\n",False)
add("c_256_w4",4,2,[],[(16,12288)]*24,0,96*12288,5,"    s_mov_b32 s18, 0\n    s_mul_hi_u32 s27, s2, 0x5555556\n    s_mul_i32 s28, s27, 48\n    s_sub_u32 s28, s2, s28\n    s_mul_i32 s19, s27, 2359296\n    s_lshl_b32 s28, s28, 8\n    s_add_u32 s19, s19, s28\n",False)
add("c_1k_w4",4,2,[],[(64,12288)]*24,0,24*12288,5,"    s_mov_b32 s18, 0\n    s_mul_hi_u32 s27, s2, 0x15555556\n    s_mul_i32 s28, s27, 12\n    s_sub_u32 s28, s2, s28\n    s_mul_i32 s19, s27, 589824\n    s_lshl_b32 s28, s28, 10\n    s_add_u32 s19, s19, s28\n",False)
for n,l in names: out+=desc(n)
out+=meta([n for n,l in names])
open('mb9.s','w').write(out)
with open('mb9.sh','w') as f:
    for n,l in names:
        f.write(f"./mb_host mb9.co {n} 256 256 {l} 20 64\n")
        f.write(f"COLD=1 ./mb_host mb9.co {n} 256 256 {l} 20 64\n")
out=HDR; names=[]
add("m_a_w4",4,2,aL,[],24576,0,5,"    s_mul_i32 s18, s2, 49152\n    s_mov_b32 s19, 0\n",False)
add("m_b_w4",4,2,aL,[],24576,0,5,"    s_add_u32 s27, s2, 3\n    s_and_b32 s27, s27, 255\n    s_mul_i32 s18, s27, 49152\n    s_mov_b32 s19, 0\n",False)
for n,l in names: out+=desc(n)
out+=meta([n for n,l in names])
open('mb10.s','w').write(out)
```
